```python
import torch

def _softmax(x, axis=-1):
    return torch.softmax(x, dim=axis)
def _gelu(x):
    return torch.nn.functional.gelu(x, approximate="tanh")
def _silu(x):
    return torch.nn.functional.silu(x)
def _sigmoid(x):
    return torch.sigmoid(x)
def _layernorm(x, axis=-1, eps=1e-5):
    m = x.mean(dim=axis, keepdim=True)
    v = x.var(dim=axis, keepdim=True, unbiased=False)
    return (x - m) / torch.sqrt(v + eps)
def _scatter_add(tgt, idx, src, axis=0):
    return tgt.clone().index_add_(axis, idx, src)
def _segment_sum(src, seg, n):
    out = torch.zeros((n,) + src.shape[1:], dtype=src.dtype)
    return out.index_add_(0, seg, src)
def _pad(x, pw):
    flat = tuple(v for pair in reversed(pw) for v in pair)
    return torch.nn.functional.pad(x, flat)

kernel_name = 'parallel_sum__sliding_block_cached__swiglu_ffn__decode'

def setup_inputs():

    _w = (lambda a: (lambda t: t.to(torch.bfloat16) if t.is_floating_point() else t)(torch.as_tensor(a)))
    def _A_setup():
        B, Sq, D = 4, 1, 448
        Hq, Hkv, Sk, Dh = 16, 8, 16384, 256
        assert Hq % Hkv == 0, (Hq, Hkv)
        return {
            "x": _w((lambda *s: torch.randn(*s, dtype=torch.bfloat16) * 0.05)(B, Sq, D)),
            "k_cache": _w((lambda *s: torch.randn(*s, dtype=torch.bfloat16) * 3.2)(B, Hkv, Sk, Dh)),
            "v_cache": _w((lambda *s: torch.randn(*s, dtype=torch.bfloat16) * 1.6)(B, Hkv, Sk, Dh)),
            "wq": _w((lambda *s: torch.randn(*s, dtype=torch.bfloat16) * 3.2)(D, Hq * Dh) * (D ** -0.5)),
            "wo": _w((lambda *s: torch.randn(*s, dtype=torch.bfloat16) * 1.6)(Hq * Dh, D) * ((Hq * Dh) ** -0.5)),
        }
    _A_in = _A_setup()

    def _B_setup():
        B, S, D, F = 4, 1, 448, 1792
        return {
            "x": _w((lambda *s: torch.randn(*s, dtype=torch.bfloat16) * 0.05)(B, S, D)),
            "w_gate": _w((lambda *s: torch.randn(*s, dtype=torch.bfloat16) * 0.05)(D, F)),
            "w_up": _w((lambda *s: torch.randn(*s, dtype=torch.bfloat16) * 0.05)(D, F)),
            "w_down": _w((lambda *s: torch.randn(*s, dtype=torch.bfloat16) * 0.05)(F, D)),
        }
    _B_in = _B_setup()

    return {
        "A_x": _A_in["x"],
        "A_k_cache": _A_in["k_cache"],
        "A_v_cache": _A_in["v_cache"],
        "A_wq": _A_in["wq"],
        "A_wo": _A_in["wo"],
        "B_x": _B_in["x"],
        "B_w_gate": _B_in["w_gate"],
        "B_w_up": _B_in["w_up"],
        "B_w_down": _B_in["w_down"],
    }

def reference(A_x, A_k_cache, A_v_cache, A_wq, A_wo, B_x, B_w_gate, B_w_up, B_w_down):
    def _A_ref(x, k_cache, v_cache, wq, wo):
        B, Sq, D = x.shape
        Hq, Dh = 16, 256
        Hkv, Sk = k_cache.shape[1], k_cache.shape[2]
        W = min(4096, max(256, Sk // 4))
        rep = Hq // Hkv
        q = (lambda x, *d: x.permute(*d))((x @ wq).reshape(B, Sq, Hq, Dh), 0, 2, 1, 3)
        k = (lambda x, n, axis: torch.repeat_interleave(x, n, dim=axis))(k_cache[:, :, Sk - W:, :], rep, axis=1)
        v = (lambda x, n, axis: torch.repeat_interleave(x, n, dim=axis))(v_cache[:, :, Sk - W:, :], rep, axis=1)
        scores = torch.einsum("bhqd,bhkd->bhqk", q, k) * (Dh ** -0.5)
        p = _softmax(scores, axis=-1)
        o = torch.einsum("bhqk,bhkd->bhqd", p, v)
        return (lambda x, *d: x.permute(*d))(o, 0, 2, 1, 3).reshape(B, Sq, Hq * Dh) @ wo

    def _B_ref(x, w_gate, w_up, w_down):
        g = _silu(x @ w_gate)
        u = x @ w_up
        return (g * u) @ w_down

    x = A_x
    xn = _layernorm(x, axis=-1)
    return x + _A_ref(xn, A_k_cache, A_v_cache, A_wq, A_wo) + _B_ref(xn, B_w_gate, B_w_up, B_w_down)
```

```python
import re
TRANS=('v_exp_f32','v_log_f32','v_rcp_f32','v_rsq_f32','v_sqrt_f32')
def regs(tok):
    tok=tok.strip()
    tok=tok.lstrip('-').strip('|')
    m=re.fullmatch(r'([vs])\[(\d+):(\d+)\]',tok)
    if m: return [m.group(1)+str(i) for i in range(int(m.group(2)),int(m.group(3))+1)]
    if re.fullmatch(r'[vs]\d+',tok): return [tok]
    if tok=='vcc': return ['vcc']
    return []
def parse(ins):
    ins=ins.split(';')[0].strip()
    p=ins.split(None,1); op=p[0]; rest=p[1] if len(p)>1 else ''
    ops=[o.strip().split(' ')[0] for o in rest.split(',')] if rest else []
    return op,ops,rest
def pad(lines):
    out=[]; hist=[]
    for ln in lines:
        s=ln.strip()
        if not s or s.startswith(';') or s.startswith('.'):
            out.append(ln); continue
        if s.endswith(':'):
            out.append(ln); out.append('s_nop 4'); hist=[]; continue
        op,ops,rest=parse(s)
        valu=op.startswith('v_'); vmem=op.startswith('buffer_') or op.startswith('global_'); ds=op.startswith('ds_')
        w=[];r=[]
        if valu:
            w=regs(ops[0]); r=[x for o in ops[1:] for x in regs(o)]
            if 'permlane' in op: w=regs(ops[0])+regs(ops[1]); r=w
            if op.startswith('v_cndmask') and len(ops)==3: r.append('vcc')
            if op.startswith('v_fmac') or op.startswith('v_dot2c') or '_dpp' in op: r=r+regs(ops[0])
        elif vmem or ds:
            r=[x for o in ops for x in regs(o)]
        dpp='_dpp' in op
        need=0
        for d,(pop,pw,pst) in enumerate(reversed(hist)):
            n=0
            if pop.startswith('v_'):
                hit=[x for x in pw if x in r]
                vh=[x for x in hit if x[0]=='v' and x!='vcc']; sh=[x for x in hit if x[0]=='s' or x=='vcc']
                if pop.startswith('v_dot2'):
                    if op==pop:
                        ab=regs(ops[1])+regs(ops[2])
                        if any(x in ab for x in pw): n=3
                    elif vh or any(x in w for x in pw): n=3
                if vh and (dpp or 'permlane' in op): n=max(n,2)
                if vh and op.startswith('v_read'): n=max(n,1)
                if vh and pop in TRANS: n=max(n,1)
                if sh and valu: n=max(n,2)
                if sh and vmem: n=max(n,5)
            if pst and valu and any(x in pst for x in w): n=max(n,2)
            need=max(need,n-d)
        if need>0:
            out.append('s_nop %d'%(need-1)); hist+= [('s_nop',[],[])]*need
        out.append(ln)
        st=[]
        if (vmem and 'store' in op and ('x3' in op or 'x4' in op)): st=regs(ops[0])
        if ds and 'write' in op and ('b128' in op or 'b96' in op): st=regs(ops[1])
        k=1
        if op=='s_nop': k=int(ops[0])+1
        hist+=[(op,w,st)]+[('s_nop',[],[])]*(k-1)
        hist=hist[-8:]
    return out
```

```python
import sys
sys.path.insert(0,'exp'); sys.path.insert(0,'k')
from hz import pad
KN="parallel_sum__sliding_block_cached__swiglu_ffn__decode_kernel"
XN=0; QP=4096; QB=6144; GU=7168; MX=9216; LS=9280; PP=9472; OR=12288; WS=2320; DH=1152; OP=OR+8*WS; LDS=OP+8*WS
REC1=0x10000; REC2=0x200000
def gen(depth=4, burst=8, nt='nt', wnt='', stamps=False, t_gu=8, t_poll=16, t_wd=34, t_wo=40, t_ml=56, pf=0, t_pf=30):
    L=[]; a=L.append
    cnt=[0]
    def vm(s): a(s); cnt[0]+=1; return cnt[0]
    def wait(m): a('s_waitcnt vmcnt(%d)'%min(63,cnt[0]-m))
    def lg(): a('s_waitcnt lgkmcnt(0)')
    def stamp(k):
        if stamps: a('s_memrealtime s[88:89]'); lg(); a('s_mov_b32 s%d, s88'%(90+k))
    def srd(d,b,off,n):
        if off is None: a('s_mov_b32 s%d, s%d'%(d,b)); a('s_mov_b32 s%d, s%d'%(d+1,b+1))
        else: a('s_add_u32 s%d, s%d, %s'%(d,b,off)); a('s_addc_u32 s%d, s%d, 0'%(d+1,b+1))
        a('s_mov_b32 s%d, %s'%(d+2,n)); a('s_mov_b32 s%d, 0x20000'%(d+3))
    def rb(v): a('v_cvt_pk_bf16_f32 v%d, v%d, v%d'%(v,v,v)); a('v_and_b32 v%d, 0xffff0000, v%d'%(v,v))
    def dpp(op,d,s0,s1,ctl,bank=0xf): a('%s_dpp v%d, v%d, v%d %s row_mask:0xf bank_mask:0x%x'%(op,d,s0,s1,ctl,bank))
    Q1='quad_perm:[1,0,3,2]'; Q2='quad_perm:[2,3,0,1]'; HM='row_half_mirror'
    def merge(lv,x,y,t):
        if lv==0: a('v_permlane16_swap_b32 v%d, v%d'%(x,y)); a('v_add_f32 v%d, v%d, v%d'%(x,x,y))
        elif lv==1: dpp('v_add_f32',x,x,x,'row_ror:8',0x3); dpp('v_add_f32',x,y,y,'row_ror:8',0xc)
        elif lv==2: dpp('v_add_f32',x,x,x,HM,0x5); dpp('v_add_f32',x,y,y,HM,0xa)
        else:
            m='s[56:57]' if lv==3 else 's[58:59]'
            a('v_cndmask_b32 v%d, v%d, v%d, %s'%(t,y,x,m)); a('v_cndmask_b32 v%d, v%d, v%d, %s'%(x,x,y,m))
            dpp('v_add_f32',x,t,x,Q2 if lv==3 else Q1)
    def red32(op,x,t):
        for c in ('row_ror:8','row_ror:4','row_ror:2','row_ror:1'): dpp(op,x,x,x,c)
        a('v_mov_b32 v%d, v%d'%(t,x)); a('v_permlane16_swap_b32 v%d, v%d'%(x,t)); a('%s v%d, v%d, v%d'%(op,x,x,t))
    def spin(name,load,rs):
        a('s_mov_b32 s61, 20000')
        a(name+'_c:')
        chk(rs); a('s_cbranch_vccz %s_d'%name)
        a('s_sub_u32 s61, s61, 1'); a('s_cbranch_scc1 %s_d'%name)
        for l in load: a(l)
        a('s_waitcnt vmcnt(0)'); a('s_branch %s_c'%name)
        a(name+'_d:')
    def chk(rs):
        if len(rs)==1: a('v_cmp_eq_u32 vcc, -1, v%d'%rs[0]); return
        a('v_max_u32 v7, v%d, v%d'%(rs[0],rs[1]))
        for k in range(2,len(rs),2): a('v_max3_u32 v7, v7, v%d, v%d'%(rs[k],rs[k+1]))
        a('v_cmp_eq_u32 vcc, -1, v7')
    a('s_cmp_ge_u32 s2, 256'); a('s_cbranch_scc1 L_end')
    a('s_load_dwordx16 s[64:79], s[0:1], 0'); a('s_load_dwordx8 s[80:87], s[0:1], 64')
    if stamps: a('s_memrealtime s[88:89]')
    a('v_and_b32 v1, 63, v0'); a('v_lshrrev_b32 v3, 6, v0'); a('v_readfirstlane_b32 s52, v3'); a('v_lshlrev_b32 v2, 4, v0')
    a('s_lshr_b32 s3, s2, 3'); a('s_and_b32 s4, s2, 7')
    a('s_lshl_b32 s5, s3, 23'); a('s_lshl_b32 s6, s4, 18'); a('s_add_u32 s5, s5, s6'); a('s_add_u32 s5, s5, %d'%(12288*512))
    a('s_lshl_b32 s6, s4, 5'); a('s_add_u32 s6, s6, s3'); a('s_lshl_b32 s6, s6, 5')
    a('s_sub_u32 s7, %d, s6'%(448*8192))
    a('s_lshr_b32 s53, s2, 6')
    a('v_lshrrev_b32 v4, 4, v1'); a('v_mul_u32_u24 v4, 896, v4'); a('v_and_b32 v5, 15, v1'); a('v_mul_u32_u24 v5, 56, v5'); a('v_add_u32 v4, v4, v5')
    a('v_and_b32 v5, 31, v1'); a('v_lshl_add_u32 v6, v3, 6, v5')
    a('v_lshlrev_b32 v22, 13, v6'); a('v_lshrrev_b32 v23, 5, v1'); a('v_lshl_add_u32 v22, v23, 4, v22')
    a('s_mov_b32 s54, 0x40000'); a('s_mov_b32 s60, 0')
    lg()
    if stamps: a('s_mov_b32 s90, s88')
    srd(36,64,None,3584); srd(16,70,'s6','s7'); srd(8,66,'s5',1<<18); srd(48,86,None,0x400000)
    for k in range(3): vm('buffer_load_dwordx4 v[%d:%d], v4, s[36:39], 0 offen offset:%d'%(8+4*k,11+4*k,16*k))
    mx=vm('buffer_load_dwordx2 v[20:21], v4, s[36:39], 0 offen offset:48')
    vm('buffer_load_dwordx4 v[52:55], v22, s[16:19], 0 offen '+wnt)
    mq=vm('buffer_load_dwordx4 v[56:59], v22, s[16:19], s54 offen '+wnt)
    a('s_lshl_b32 s62, s2, 12'); a('s_add_u32 s62, s62, %d'%REC1)
    a('s_lshl_b32 s63, s2, 11'); a('s_add_u32 s63, s63, %d'%REC2)
    a('s_cmp_lg_u32 s52, 7'); a('s_cbranch_scc1 L_noclr')
    for k in range(4): a('v_mov_b32 v%d, -1'%(60+k))
    a('v_lshlrev_b32 v64, 4, v1')
    for o in (0,1024,2048): a('buffer_store_dwordx4 v[60:63], v64, s[48:51], s62 offen offset:%d sc1'%o)
    for o in (0,1024): a('buffer_store_dwordx4 v[60:63], v64, s[48:51], s63 offen offset:%d sc1'%o)
    a('L_noclr:')
    mclr=cnt[0]
    ms={}
    def slot(t): return 128+4*(t if t<32 else (t-32)%8)
    def issue(t):
        if t==32: a('s_mov_b32 s60, 0')
        ms[t]=vm('buffer_load_dwordx4 v[%d:%d], v2, s[%d:%d], s60 offen %s'%(slot(t),slot(t)+3,8 if t<32 else 12,11 if t<32 else 15,nt))
        a('s_add_u32 s60, s60, 0x2000')
    for t in range(burst): issue(t)
    srd(12,68,'s5',1<<18); srd(44,84,None,256); srd(40,82,None,3584)
    a('s_and_b32 s5, s3, 7'); a('s_lshl_b32 s55, s4, 3'); a('s_add_u32 s55, s55, s5')
    a('s_mul_i32 s5, s55, 56'); srd(24,76,'s5',448*3584); srd(28,78,'s5',448*3584)
    a('s_mul_i32 s5, s55, %d'%(28*896)); srd(32,80,'s5',28*896)
    a('s_and_b32 s55, s2, 63'); a('s_mul_i32 s5, s55, %d'%(64*896)); srd(20,72,'s5',64*896)
    a('s_mov_b32 s56, 0xcccccccc'); a('s_mov_b32 s57, s56'); a('s_mov_b32 s58, 0xaaaaaaaa'); a('s_mov_b32 s59, s58')
    a('s_mov_b32 s64, 0x05040100'); a('s_mov_b32 s65, 0x07060302'); a('s_mov_b32 s66, 0x3db8aa3b')
    wait(mx)
    for k in range(14):
        a('v_lshlrev_b32 v%d, 16, v%d'%(24+2*k,8+k)); a('v_and_b32 v%d, 0xffff0000, v%d'%(25+2*k,8+k))
    a('v_pk_add_f32 v[60:61], v[24:25], v[26:27]')
    for k in range(2,14): a('v_pk_add_f32 v[60:61], v[60:61], v[%d:%d]'%(24+2*k,25+2*k))
    a('v_add_f32 v60, v60, v61')
    for c in ('row_ror:8','row_ror:4','row_ror:2','row_ror:1'): dpp('v_add_f32',60,60,60,c)
    a('v_mul_f32 v60, 0x3b124925, v60')
    a('v_mov_b32 v62, 0'); a('v_mov_b32 v63, 0')
    for k in range(28):
        a('v_sub_f32 v%d, v%d, v60'%(64+k,24+k))
    for k in range(28): a('v_fmac_f32 v%d, v%d, v%d'%(62+(k&1),64+k,64+k))
    a('v_add_f32 v62, v62, v63')
    for c in ('row_ror:8','row_ror:4','row_ror:2','row_ror:1'): dpp('v_add_f32',62,62,62,c)
    a('v_mul_f32 v62, 0x3b124925, v62'); rb(62); rb(60)
    a('v_add_f32 v62, 0x3727c5ac, v62'); rb(62); a('v_sqrt_f32 v62, v62'); rb(62); a('v_rcp_f32 v63, v62')
    for k in range(28): a('v_sub_f32 v%d, v%d, v60'%(24+k,24+k))
    for k in range(14): a('v_cvt_pk_bf16_f32 v%d, v%d, v%d'%(8+k,24+2*k,25+2*k))
    for k in range(14):
        a('v_lshlrev_b32 v%d, 16, v%d'%(24+2*k,8+k)); a('v_and_b32 v%d, 0xffff0000, v%d'%(25+2*k,8+k))
    for k in range(28): a('v_mul_f32 v%d, v%d, v63'%(64+k,24+k))
    for k in range(28): a('v_fma_f32 v%d, -v%d, v62, v%d'%(24+k,64+k,24+k))
    for k in range(28): a('v_fmac_f32 v%d, v%d, v63'%(64+k,24+k))
    for k in range(14): a('v_cvt_pk_bf16_f32 v%d, v%d, v%d'%(8+k,64+2*k,65+2*k))
    for k in range(7): a('ds_write_b64 v4, v[%d:%d] offset:%d'%(8+2*k,9+2*k,XN+8*k))
    a('v_lshlrev_b32 v6, 1, v6')
    for b in range(4):
        a('ds_read_u16 v%d, v6 offset:%d'%(104+b,XN+896*b)); a('ds_read_u16 v%d, v6 offset:%d'%(108+b,XN+896*b+64))
    a('v_lshrrev_b32 v16, 3, v1'); a('v_mul_u32_u24 v17, 56, v3'); a('v_add_u32 v17, v17, v16')
    a('s_mul_i32 s5, s53, 896'); a('v_lshl_add_u32 v18, v17, 1, s5')
    for k in range(7): a('ds_read_u16 v%d, v18 offset:%d'%(112+k,XN+16*k))
    a('v_mul_u32_u24 v17, 3584, v17'); a('v_and_b32 v19, 7, v1'); a('v_min_u32 v20, 6, v19'); a('v_lshl_add_u32 v17, v20, 3, v17')
    a('v_bfrev_b32 v5, v5'); a('v_lshrrev_b32 v5, 27, v5')
    wait(mq)
    for k in range(4):
        a('v_perm_b32 v%d, v%d, v%d, s64'%(96+2*k,56+k,52+k)); a('v_perm_b32 v%d, v%d, v%d, s65'%(97+2*k,56+k,52+k))
    lg()
    for b in range(4): a('v_lshl_or_b32 v%d, v%d, 16, v%d'%(104+b,108+b,104+b))
    for k in range(7): a('v_lshlrev_b32 v%d, 16, v%d'%(112+k,112+k))
    for b in range(4):
        for c in range(8): a('v_dot2_f32_bf16 v%d, v%d, v%d, 0'%(64+8*b+c,96+c,104+b))
    for lv in range(5):
        for i in range(0,32,2<<lv): merge(lv,64+i,64+i+(1<<lv),96+(i>>lv+1))
    a('v_lshrrev_b32 v21, 3, v5'); a('v_lshlrev_b32 v21, 6, v21'); a('v_and_b32 v22, 7, v5'); a('v_lshl_add_u32 v21, v22, 2, v21')
    a('v_lshl_add_u32 v21, v23, 5, v21'); a('v_lshl_add_u32 v21, v3, 8, v21')
    a('ds_write_b32 v21, v64 offset:%d'%QP)
    wait(mclr); lg(); a('s_barrier')
    a('s_cmp_lg_u32 s52, 0'); a('s_cbranch_scc1 L_noq')
    a('v_lshlrev_b32 v21, 3, v1'); a('s_mov_b32 exec_hi, 0')
    for k in range(7): a('ds_read_b64 v[%d:%d], v21 offset:%d'%(64+2*k,65+2*k,QP+256*k))
    a('v_lshlrev_b32 v22, 13, v16'); a('v_lshl_add_u32 v22, v19, 2, v22')
    lg()
    for k in range(1,7): a('v_pk_add_f32 v[64:65], v[64:65], v[%d:%d]'%(64+2*k,65+2*k))
    a('v_cvt_pk_bf16_f32 v64, v64, v65')
    a('buffer_store_dword v64, v22, s[48:51], s6 offen sc1')
    a('s_mov_b64 exec, -1'); a('s_mov_b32 s79, 1')
    a('s_waitcnt vmcnt(0)'); a('s_atomic_add s79, s[84:85], 0')
    a('L_noq:')
    stamp(1)
    work={t:[] for t in range(burst,70)}
    st={}
    def W(t,f): work[t].append(f)
    def gu_issue(k):
        def f():
            a('s_mov_b32 s5, %d'%(28672*k))
            vm('buffer_load_dwordx2 v[%d:%d], v17, s[24:27], s5 offen %s'%(24+2*k,25+2*k,wnt))
            st['gu']=vm('buffer_load_dwordx2 v[%d:%d], v17, s[28:31], s5 offen %s'%(38+2*k,39+2*k,wnt))
        return f
    for k in range(7): W(t_gu+k,gu_issue(k))
    def gu_comp():
        wait(st['gu'])
        for m in range(2):
            for k in range(7):
                for j in range(2):
                    r=24+14*m+2*k+j
                    a('v_lshlrev_b32 v60, 16, v%d'%r); a('v_and_b32 v61, 0xffff0000, v%d'%r)
                    for e in range(2):
                        d=64+4*m+2*j+e
                        a(('v_mul_f32' if k==0 else 'v_fmac_f32')+' v%d, v%d, v%d'%(d,60+e,112+k))
        for d in range(4):
            a('v_permlane32_swap_b32 v%d, v%d'%(64+d,68+d)); a('v_add_f32 v%d, v%d, v%d'%(64+d,64+d,68+d))
        for d in range(4): dpp('v_add_f32',64+d,64+d,64+d,'row_ror:8')
        for d in range(4):
            a('v_mov_b32 v%d, v%d'%(68+d,64+d))
        for d in range(4):
            a('v_permlane16_swap_b32 v%d, v%d'%(64+d,68+d)); a('v_add_f32 v%d, v%d, v%d'%(64+d,64+d,68+d))
        a('v_lshlrev_b32 v60, 8, v3'); a('v_lshl_add_u32 v60, v23, 7, v60'); a('v_lshl_add_u32 v60, v19, 4, v60')
        a('ds_write_b128 v60, v[64:67] offset:%d'%GU)
    W(t_gu+7+depth,gu_comp)
    assert t_gu+7+depth<=t_poll+8
    PL='buffer_load_dword v21, off, s[44:47], 0 sc1'
    def poll1():
        a('s_cmp_lg_u32 s52, 0'); a('s_cbranch_scc1 L_p1'); a(PL); a('L_p1:'); st['p']=cnt[0]
    def poll2():
        a('s_cmp_lg_u32 s52, 0'); a('s_cbranch_scc1 L_p2'); wait(st['p'])
        a('s_mov_b32 s61, 20000'); a('L_p2c:'); a('v_readfirstlane_b32 s5, v21'); a('s_cmp_ge_u32 s5, 256'); a('s_cbranch_scc1 L_p2d')
        a('s_sub_u32 s61, s61, 1'); a('s_cbranch_scc1 L_p2d'); a(PL); a('s_waitcnt vmcnt(0)'); a('s_branch L_p2c')
        a('L_p2d:'); a('s_lshl_b32 s5, s3, 10')
        a('buffer_load_dwordx4 v[8:11], v2, s[48:51], s5 offen sc1'); a('L_p2:'); st['p']=cnt[0]
    def poll3():
        a('s_cmp_lg_u32 s52, 0'); a('s_cbranch_scc1 L_p3'); wait(st['p'])
        a('ds_write_b128 v2, v[8:11] offset:%d'%QB); a('L_p3:')
        lg(); a('s_barrier'); stamp(2)
        a('v_and_b32 v60, 31, v1'); a('v_lshlrev_b32 v60, 4, v60')
        a('ds_read_b128 v[8:11], v60 offset:%d'%QB); a('ds_read_b128 v[12:15], v60 offset:%d'%(QB+512)); lg()
    W(t_poll,poll1); W(t_poll+4,poll2); W(t_poll+8,poll3)
    tq=t_poll+8
    stack=[[],[]]; pool=list(range(64,96))
    def kpair(i):
        def f():
            wait(ms[i+1])
            r=[[pool.pop(0),pool.pop(0)] for h in range(2)]
            for k in range(4):
                for e in range(2):
                    for h in range(2):
                        a('v_dot2_f32_bf16 v%d, v%d, v%d, %s'%(r[h][e],slot(i+e)+k,8+4*h+k,'0' if k==0 else 'v%d'%r[h][e]))
            for h in range(2):
                merge(0,r[h][0],r[h][1],60); pool.append(r[h][1]); stack[h].append((1,r[h][0]))
            while len(stack[0])>1 and stack[0][-1][0]==stack[0][-2][0]:
                for h in range(2):
                    lv,y=stack[h].pop(); _,x=stack[h].pop(); merge(lv,x,y,60+h); pool.append(y); stack[h].append((lv+1,x))
        return f
    t=tq; n=0
    for i in range(0,32,2):
        while i+1>t-depth or n>=3: t+=1; n=0
        W(t,kpair(i)); n+=1
        if i<8: assert t<32+i
    tk=t
    def soft():
        r0=stack[0][0][1]; r1=stack[1][0][1]
        a('v_cvt_pk_bf16_f32 v60, v%d, v%d'%(r0,r1)); a('v_lshlrev_b32 v8, 16, v60'); a('v_and_b32 v9, 0xffff0000, v60')
        a('v_mov_b32 v10, v8'); a('v_mov_b32 v11, v9'); a('v_permlane32_swap_b32 v10, v11'); a('v_max_f32 v10, v10, v11'); red32('v_max_f32',10,11)
        a('v_lshlrev_b32 v12, 2, v3'); a('v_lshl_add_u32 v12, v23, 5, v12')
        a('ds_write_b32 v12, v10 offset:%d'%MX); lg(); a('s_barrier')
        a('v_mov_b32 v13, 0')
        for k in range(4): a('ds_read_b128 v[%d:%d], v13 offset:%d'%(64+4*k,67+4*k,MX+16*k))
        lg()
        for h in range(2):
            b=64+8*h; a('v_max3_f32 v%d, v%d, v%d, v%d'%(b,b,b+1,b+2)); a('v_max3_f32 v%d, v%d, v%d, v%d'%(b+3,b+3,b+4,b+5))
            a('v_max3_f32 v%d, v%d, v%d, v%d'%(b,b,b+6,b+7)); a('v_max_f32 v%d, v%d, v%d'%(88+2*h,b,b+3))
        for h in range(2):
            a('v_sub_f32 v%d, v%d, v%d'%(8+h,8+h,88+2*h)); a('v_mul_f32 v%d, s66, v%d'%(8+h,8+h)); a('v_exp_f32 v%d, v%d'%(8+h,8+h))
        a('v_cvt_pk_bf16_f32 v60, v8, v9')
        a('v_lshlrev_b32 v13, 8, v3'); a('v_lshl_add_u32 v13, v23, 7, v13'); a('v_lshl_add_u32 v14, v5, 1, v13')
        a('ds_write_b16 v14, v60 offset:%d'%PP); a('ds_write_b16_d16_hi v14, v60 offset:%d'%(PP+64))
        for k in range(8): a('ds_read_b128 v[%d:%d], v13 offset:%d'%(96+4*k,99+4*k,PP+16*k))
        a('v_permlane32_swap_b32 v8, v9'); a('v_add_f32 v8, v8, v9'); red32('v_add_f32',8,9)
        a('ds_write_b32 v12, v8 offset:%d'%LS); lg(); stamp(3)
    W(tk,soft)
    def vpair(i):
        def f():
            wait(ms[i+1]); j=(i-32)//2; A=slot(i); B=slot(i+1)
            for k in range(4):
                a('v_perm_b32 v%d, v%d, v%d, s64'%(80+2*k,B+k,A+k)); a('v_perm_b32 v%d, v%d, v%d, s65'%(81+2*k,B+k,A+k))
            for d in range(8):
                for h in range(2): a('v_dot2_f32_bf16 v%d, v%d, v%d, %s'%(64+8*h+d,80+d,96+16*h+j,'0' if j==0 else 'v%d'%(64+8*h+d)))
        return f
    for i in range(32,64,2):
        t=max(tk,min(i+1+depth,64)); assert t<i+8 or i+8>63; W(t,vpair(i))
    def mlpub():
        a('s_barrier'); a('s_cmp_lg_u32 s52, 0'); a('s_cbranch_scc1 L_ml'); a('v_mov_b32 v13, 0')
        for k in range(4): a('ds_read_b128 v[%d:%d], v13 offset:%d'%(24+4*k,27+4*k,LS+16*k))
        lg()
        for h in range(2):
            b=24+8*h
            for k in (2,4,6): a('v_pk_add_f32 v[%d:%d], v[%d:%d], v[%d:%d]'%(b,b+1,b,b+1,b+k,b+k+1))
            a('v_add_f32 v%d, v%d, v%d'%(89+2*h,b,b+1))
        a('s_mov_b64 exec, 1'); a('buffer_store_dwordx4 v[88:91], off, s[48:51], s62 offset:2048 sc1'); a('s_mov_b64 exec, -1'); a('L_ml:')
    W(tk+2,mlpub)
    t_wd=max(t_wd,tk+1); t_wo=max(t_wo,tk+1)
    def wd_issue():
        a('v_mul_u32_u24 v40, 3584, v3'); a('v_lshlrev_b32 v41, 4, v1'); a('v_cmp_gt_u32 vcc, 56, v1'); a('v_mov_b32 v42, 0x40000000'); a('v_cndmask_b32 v41, v42, v41, vcc')
        a('v_lshl_add_u32 v43, v40, 1, v41'); a('v_add_u32 v44, 3584, v43'); a('v_add_u32 v41, v40, v41')
        for r in range(4): st['wd']=vm('buffer_load_dwordx4 v[%d:%d], v41, s[32:35], 0 offen offset:%d %s'%(224+4*r,227+4*r,896*r,wnt))
    W(t_wd,wd_issue)
    def wd_comp():
        a('v_lshlrev_b32 v45, 8, v19'); a('v_lshl_add_u32 v45, v3, 4, v45')
        a('ds_read_b128 v[24:27], v45 offset:%d'%GU); a('ds_read_b128 v[28:31], v45 offset:%d'%(GU+128)); lg()
        for c in (Q1,Q2,HM):
            for d in range(8): dpp('v_add_f32',24+d,24+d,24+d,c)
        for d in range(8): rb(24+d)
        for d in range(4): a('v_mul_f32 v%d, 0xbfb8aa3b, v%d'%(32+d,24+d))
        for d in range(4): a('v_exp_f32 v%d, v%d'%(32+d,32+d))
        for d in range(4): a('v_add_f32 v%d, 1.0, v%d'%(32+d,32+d))
        for d in range(4): a('v_rcp_f32 v%d, v%d'%(32+d,32+d))
        for d in range(4): a('v_mul_f32 v%d, v%d, v%d'%(24+d,24+d,32+d))
        for d in range(4): rb(24+d)
        for d in range(4): a('v_mul_f32 v%d, v%d, v%d'%(24+d,24+d,28+d))
        a('v_cvt_pk_bf16_f32 v24, v24, v25'); a('v_cvt_pk_bf16_f32 v25, v26, v27')
        wait(st['wd'])
        for p in range(2):
            for k in range(4):
                A=224+8*p+k; a('v_perm_b32 v%d, v%d, v%d, s64'%(28+2*k,A+4,A)); a('v_perm_b32 v%d, v%d, v%d, s65'%(29+2*k,A+4,A))
            for d in range(8): a('v_dot2_f32_bf16 v%d, v%d, v%d, %s'%(48+d,28+d,24+p,'0' if p==0 else 'v%d'%(48+d)))
    W(max(t_wd+depth+1,tk+3),wd_comp)
    def wo_issue(p):
        def f():
            for r in (2*p,2*p+1): st['wo']=vm('buffer_load_dwordx4 v[%d:%d], v%d, s[20:23], 0 offen offset:%d %s'%(160+4*r,163+4*r,43+(r>>2),896*(r&3),wnt))
        return f
    def wo_perm():
        wait(st['wo'])
        for p in range(4):
            for k in range(4):
                A=160+8*p+k; a('v_perm_b32 v%d, v%d, v%d, s64'%(192+8*p+2*k,A+4,A)); a('v_perm_b32 v%d, v%d, v%d, s65'%(193+8*p+2*k,A+4,A))
    late = t_wo>=63
    for p in range(4): W(min(63,t_wo+2*p),wo_issue(p))
    if not late: W(min(64,t_wo+7+depth),wo_perm)
    ML='buffer_load_dwordx2 v[24:25], v26, s[48:51], s67 offen offset:2048 sc1'
    def ml1():
        a('s_lshl_b32 s67, s3, 15'); a('s_add_u32 s67, s67, %d'%REC1); a('s_lshr_b32 s5, s4, 2'); a('s_lshl_b32 s5, s5, 3')
        a('v_lshl_add_u32 v26, v19, 12, s5'); st['ml']=vm(ML)
        a('s_lshl_b32 s5, s4, 8'); a('v_lshlrev_b32 v27, 12, v19'); a('v_lshl_add_u32 v27, v16, 2, v27'); a('v_lshl_add_u32 v27, v3, 5, v27'); a('v_add_u32 v27, s5, v27')
        a('v_mul_u32_u24 v28, %d, v3'%WS); a('v_lshl_add_u32 v28, v1, 4, v28')
        a('v_and_b32 v29, 3, v1'); a('v_mul_u32_u24 v29, %d, v29'%(2*WS)); a('v_bfe_u32 v30, v1, 2, 1'); a('v_mul_u32_u24 v30, %d, v30'%DH); a('v_add_u32 v29, v29, v30')
        a('v_lshl_add_u32 v29, v16, 4, v29'); a('v_lshl_add_u32 v29, v3, 7, v29')
        a('v_lshlrev_b32 v30, 2, v0')
        a('s_lshl_b32 s68, s53, 17'); a('s_add_u32 s68, s68, %d'%REC2); a('s_lshl_b32 s5, s55, 7'); a('s_add_u32 s68, s68, s5')
        a('v_lshlrev_b32 v31, 11, v19'); a('v_lshl_add_u32 v31, v16, 4, v31')
        a('s_mul_i32 s5, s53, 896'); a('s_lshl_b32 s7, s55, 6'); a('s_add_u32 s5, s5, s7'); a('v_lshl_add_u32 v32, v16, 3, s5')
        for k in range(1,8): a('s_add_u32 s%d, s68, %d'%(68+k,16384*k))
        vm('buffer_load_dwordx2 v[34:35], v32, s[36:39], 0 offen')
    def ml2():
        wait(st['ml']); spin('L_mls',[ML],[24,25])
        a('v_mov_b32 v36, v24')
        for c in (Q1,Q2,HM): dpp('v_max_f32',36,36,36,c)
        a('v_sub_f32 v24, v24, v36'); a('v_mul_f32 v24, s66, v24'); a('v_exp_f32 v24, v24'); a('v_mul_f32 v25, v24, v25')
        for c in (Q1,Q2,HM): dpp('v_add_f32',25,25,25,c)
        a('v_rcp_f32 v25, v25'); a('v_mul_f32 v33, v24, v25')
    W(t_ml,ml1); W(t_ml+depth+1,ml2)
    def pfetch():
        a('s_getpc_b64 s[76:77]'); a('L_pc:'); a('s_add_u32 s76, s76, L_tail-L_pc-%d'%0); a('s_addc_u32 s77, s77, 0')
        a('v_lshlrev_b32 v46, 6, v1'); a('v_min_u32 v46, L_end-L_tail, v46'); vm('global_load_dword v47, v46, s[76:77]')
    if pf: W(t_pf,pfetch)
    for t in range(burst,65):
        if t<64:
            if t-depth>=0: wait(ms[t-depth])
            issue(t)
        if t==64: a('L_tail:')
        for f in work[t]: f()
    for t in range(65,70): assert not work[t]
    stamp(4)
    def xred(base,src,soff,lab):
        a('ds_write_b128 v28, v[%d:%d] offset:%d'%(src,src+3,base)); a('ds_write_b128 v28, v[%d:%d] offset:%d'%(src+4,src+7,base+DH))
        lg(); a('s_barrier')
        if lab: a('s_cmp_eq_u32 s52, 7'); a('s_cbranch_scc1 '+lab)
        a('ds_read_b128 v[80:83], v29 offset:%d'%base); a('ds_read_b128 v[84:87], v29 offset:%d'%(base+WS)); lg()
        a('v_pk_add_f32 v[80:81], v[80:81], v[84:85]'); a('v_pk_add_f32 v[82:83], v[82:83], v[86:87]')
        for c in (Q1,Q2):
            for d in range(4): dpp('v_add_f32',80+d,80+d,80+d,c)
        a('s_mov_b32 exec_lo, 0x11111111'); a('s_mov_b32 exec_hi, 0x11111111')
        a('buffer_store_dwordx4 v[80:83], v30, s[48:51], %s offen sc1'%soff)
    for d in range(8): a('v_permlane32_swap_b32 v%d, v%d'%(64+d,72+d))
    for d in range(0,8,2): a('v_pk_add_f32 v[%d:%d], v[%d:%d], v[%d:%d]'%(64+d,65+d,64+d,65+d,72+d,73+d))
    xred(OR,64,'s62',None)
    a('s_mov_b64 exec, -1')
    OL='buffer_load_dword v24, v27, s[48:51], s67 offen sc1'
    a(OL)
    if late: cnt[0]+=2; wo_perm()
    a('s_waitcnt vmcnt(0)'); spin('L_os',[OL],[24])
    stamp(5)
    a('v_mul_f32 v24, v24, v33')
    for c in (Q1,Q2,HM): dpp('v_add_f32',24,24,24,c)
    a('v_mov_b32_dpp v25, v24 row_ror:8 row_mask:0xf bank_mask:0xf'); a('v_cvt_pk_bf16_f32 v24, v24, v25')
    for p in range(4): a('v_readlane_b32 s%d, v24, %d'%(76+p,16*p))
    for p in range(4):
        for d in range(8): a('v_dot2_f32_bf16 v%d, v%d, s%d, v%d'%(48+d,192+8*p+d,76+p,48+d))
    xred(OP,48,'s63','L_fin')
    a('s_branch L_done')
    a('L_fin:')
    a('s_cmp_ge_u32 s55, 14'); a('s_cbranch_scc1 L_done')
    FL=['buffer_load_dwordx4 v[%d:%d], v31, s[48:51], s%d offen sc1'%(96+4*k,99+4*k,68+k) for k in range(8)]
    for l in FL: a(l)
    a('s_waitcnt vmcnt(0)'); spin('L_fs',FL,list(range(96,128)))
    for s in (16,8,4):
        for k in range(0,s,2): a('v_pk_add_f32 v[%d:%d], v[%d:%d], v[%d:%d]'%(96+k,97+k,96+k,97+k,96+s+k,97+s+k))
    a('v_lshlrev_b32 v36, 16, v34'); a('v_and_b32 v37, 0xffff0000, v34'); a('v_lshlrev_b32 v38, 16, v35'); a('v_and_b32 v39, 0xffff0000, v35')
    for c in (Q1,Q2,HM):
        for d in range(4): dpp('v_add_f32',96+d,96+d,96+d,c)
    a('v_pk_add_f32 v[96:97], v[96:97], v[36:37]'); a('v_pk_add_f32 v[98:99], v[98:99], v[38:39]')
    a('v_cvt_pk_bf16_f32 v96, v96, v97'); a('v_cvt_pk_bf16_f32 v97, v98, v99')
    a('s_mov_b32 exec_lo, 0x01010101'); a('s_mov_b32 exec_hi, 0x01010101')
    a('buffer_store_dwordx2 v[96:97], v32, s[40:43], 0 offen')
    a('L_done:')
    if stamps:
        stamp(6); a('s_getreg_b32 s97, hwreg(HW_REG_XCC_ID)'); srd(8,86,'0x20000000',1<<20)
        a('s_lshl_b32 s5, s2, 3'); a('s_add_u32 s5, s5, s52'); a('s_lshl_b32 s5, s5, 5'); a('s_mov_b64 exec, 1')
        for k in range(8): a('v_mov_b32 v%d, s%d'%(8+k,90+k))
        a('buffer_store_dwordx4 v[8:11], off, s[8:11], s5'); a('buffer_store_dwordx4 v[12:15], off, s[8:11], s5 offset:16')
    a('L_end:')
    ref=open('parallel_sum__sliding_block_cached__swiglu_ffn__decode.s.ref').read().split('\n')
    i0=[i for i,l in enumerate(ref) if l.startswith(KN+':')][0]; i1=[i for i,l in enumerate(ref) if l.startswith('s_endpgm')][0]
    hdr=['; @launch grid=(256,1,1) block=(512,1,1) lds=%d'%LDS if l.startswith('; @launch') else l for l in ref[:i0+1]]
    body=[l if l.endswith(':') else '    '+l for l in pad(L)]
    return '\n'.join(hdr+body+ref[i1:])
if __name__=='__main__':
    from asm import build
    name=sys.argv[1]; kw=eval('dict(%s)'%(sys.argv[2] if len(sys.argv)>2 else ''))
    open(name+'.s','w').write(gen(**kw)); build(name+'.s',name+'.co'); print('ok',LDS)
```

```python
import sys
sys.path.insert(0,'exp'); sys.path.insert(0,'k')
from hz import pad
KN="parallel_sum__sliding_block_cached__swiglu_ffn__decode_kernel"
XN=0; QP=4096; QB=6144; GU=7168; MX=9216; LS=9280; PP=9472; OR=12288; WS=2320; DH=1152; OP=OR+8*WS; LDS=OP+8*WS
REC1=0x10000; REC2=0x200000
def gen(depth=4, burst=4, nt='nt', wnt='nt', stamps=False, t_gu=8, t_poll=21, t_wd=34, t_wo=40, t_ml=52, pf=1, gap=1000, d1=4, t_up=40, slope=1, kpt=3, ont='nt', drop='', bar0=1, pro=0, xnt='', qnt='nt', t_ar=2):
    L=[]; auto=[0]; acc=[0]; nxt=[burst]
    def a(x):
        L.append(x)
        if auto[0] and x.startswith('v_'):
            acc[0]+=1
            if acc[0]>=auto[0]: acc[0]=0; issue(nxt[0]); nxt[0]+=1
    cnt=[0]
    def vm(s): a(s); cnt[0]+=1; return cnt[0]
    def wait(m): a('s_waitcnt vmcnt(%d)'%min(63,cnt[0]-m))
    def lg(): a('s_waitcnt lgkmcnt(0)')
    def stamp(k,p=0):
        if stamps and (p==pro or k in (1,6)): a('s_memrealtime s[88:89]'); lg(); a('s_mov_b32 s%d, s88'%(90+k))
    def srd(d,b,off,n):
        if off is None: a('s_mov_b32 s%d, s%d'%(d,b)); a('s_mov_b32 s%d, s%d'%(d+1,b+1))
        else: a('s_add_u32 s%d, s%d, %s'%(d,b,off)); a('s_addc_u32 s%d, s%d, 0'%(d+1,b+1))
        a('s_mov_b32 s%d, %s'%(d+2,n)); a('s_mov_b32 s%d, 0x20000'%(d+3))
    def rb(v): a('v_cvt_pk_bf16_f32 v%d, v%d, v%d'%(v,v,v)); a('v_and_b32 v%d, 0xffff0000, v%d'%(v,v))
    def dpp(op,d,s0,s1,ctl,bank=0xf): a('%s_dpp v%d, v%d, v%d %s row_mask:0xf bank_mask:0x%x'%(op,d,s0,s1,ctl,bank))
    Q1='quad_perm:[1,0,3,2]'; Q2='quad_perm:[2,3,0,1]'; HM='row_half_mirror'
    def merge(lv,x,y,t):
        if lv==0: a('v_permlane16_swap_b32 v%d, v%d'%(x,y)); a('v_add_f32 v%d, v%d, v%d'%(x,x,y))
        elif lv==1: dpp('v_add_f32',x,x,x,'row_ror:8',0x3); dpp('v_add_f32',x,y,y,'row_ror:8',0xc)
        elif lv==2: dpp('v_add_f32',x,x,x,HM,0x5); dpp('v_add_f32',x,y,y,HM,0xa)
        else:
            m='s[56:57]' if lv==3 else 's[58:59]'
            a('v_cndmask_b32 v%d, v%d, v%d, %s'%(t,y,x,m)); a('v_cndmask_b32 v%d, v%d, v%d, %s'%(x,x,y,m))
            dpp('v_add_f32',x,t,x,Q2 if lv==3 else Q1)
    def red32(op,x,t):
        for c in ('row_ror:8','row_ror:4','row_ror:2','row_ror:1'): dpp(op,x,x,x,c)
        a('v_mov_b32 v%d, v%d'%(t,x)); a('v_permlane16_swap_b32 v%d, v%d'%(x,t)); a('%s v%d, v%d, v%d'%(op,x,x,t))
    def spin(name,load,rs):
        a('s_mov_b32 s61, 20000')
        a(name+'_c:')
        chk(rs); a('s_cbranch_vccz %s_d'%name)
        a('s_sub_u32 s61, s61, 1'); a('s_cbranch_scc1 %s_d'%name)
        for l in load: a(l)
        a('s_waitcnt vmcnt(0)'); a('s_branch %s_c'%name)
        a(name+'_d:')
    def chk(rs):
        if len(rs)==1: a('v_cmp_eq_u32 vcc, -1, v%d'%rs[0]); return
        a('v_max_u32 v7, v%d, v%d'%(rs[0],rs[1]))
        for k in range(2,len(rs),2): a('v_max3_u32 v7, v7, v%d, v%d'%(rs[k],rs[k+1]))
        a('v_cmp_eq_u32 vcc, -1, v7')
    a('s_cmp_ge_u32 s2, 256'); a('s_cbranch_scc1 L_end')
    a('s_load_dwordx16 s[64:79], s[0:1], 0'); a('s_load_dwordx8 s[80:87], s[0:1], 64')
    if stamps: a('s_memrealtime s[88:89]')
    if pf:
        a('s_getpc_b64 s[4:5]'); a('v_lshlrev_b32 v46, 6, v0'); a('v_min_u32 v46, L_end-%s-64, v46'%KN); vm('global_load_dword v47, v46, s[4:5]')
    a('v_and_b32 v1, 63, v0'); a('v_lshrrev_b32 v3, 6, v0'); a('v_readfirstlane_b32 s52, v3'); a('v_lshlrev_b32 v2, 4, v0')
    a('s_lshr_b32 s3, s2, 3'); a('s_and_b32 s4, s2, 7')
    a('s_lshl_b32 s5, s3, 23'); a('s_lshl_b32 s6, s4, 18'); a('s_add_u32 s5, s5, s6'); a('s_add_u32 s5, s5, %d'%(12288*512))
    a('s_lshl_b32 s6, s4, 5'); a('s_add_u32 s6, s6, s3'); a('s_lshl_b32 s6, s6, 5')
    a('s_sub_u32 s7, %d, s6'%(448*8192))
    a('s_lshr_b32 s53, s2, 6')
    a('v_mul_u32_u24 v4, 896, v3'); a('v_lshl_add_u32 v4, v1, 4, v4')
    a('v_and_b32 v5, 31, v1'); a('v_lshl_add_u32 v6, v3, 6, v5')
    a('v_lshlrev_b32 v22, 13, v6'); a('v_lshrrev_b32 v23, 5, v1'); a('v_lshl_add_u32 v22, v23, 4, v22')
    a('s_mov_b32 s54, 0x40000'); a('s_mov_b32 s60, 0')
    lg()
    if stamps: a('s_mov_b32 s90, s88')
    srd(36,64,None,3584); srd(16,70,'s6',0 if 'q' in drop else 's7'); srd(8,66,'s5',1<<18); srd(48,86,None,0x400000)
    mx=vm('buffer_load_dwordx4 v[96:99], v4, s[36:39], 0 offen '+xnt)
    vm('buffer_load_dwordx4 v[52:55], v22, s[16:19], 0 offen '+qnt)
    mq=vm('buffer_load_dwordx4 v[56:59], v22, s[16:19], s54 offen '+qnt)
    a('s_lshl_b32 s62, s2, 12'); a('s_add_u32 s62, s62, %d'%REC1)
    a('s_lshl_b32 s63, s2, 11'); a('s_add_u32 s63, s63, %d'%REC2)
    a('s_cmp_lg_u32 s52, 7'); a('s_cbranch_scc1 L_noclr')
    for k in range(4): a('v_mov_b32 v%d, -1'%(60+k))
    a('v_lshlrev_b32 v64, 4, v1')
    for o in (0,1024,2048): a('buffer_store_dwordx4 v[60:63], v64, s[48:51], s62 offen offset:%d sc1'%o)
    for o in (0,1024): a('buffer_store_dwordx4 v[60:63], v64, s[48:51], s63 offen offset:%d sc1'%o)
    a('L_noclr:')
    mclr=cnt[0]
    ms={}
    def slot(t): return 128+4*(t if t<32 else (t-32)%16)
    def issue(t):
        if t==32: a('s_mov_b32 s60, 0')
        ms[t]=vm('buffer_load_dwordx4 v[%d:%d], v2, s[%d:%d], s60 offen %s'%(slot(t),slot(t)+3,8 if t<32 else 12,11 if t<32 else 15,nt))
        a('s_add_u32 s60, s60, 0x2000')
    if bar0: a('s_barrier')
    for t in range(burst): issue(t)
    srd(12,68,'s5',1<<18); srd(44,84,None,256); srd(40,82,None,3584)
    a('s_and_b32 s5, s3, 7'); a('s_lshl_b32 s55, s4, 3'); a('s_add_u32 s55, s55, s5')
    a('s_mul_i32 s5, s55, 56'); srd(24,76,'s5',0 if 'g' in drop else 448*3584); srd(28,78,'s5',0 if 'g' in drop else 448*3584)
    a('s_mul_i32 s5, s55, %d'%(28*896)); srd(32,80,'s5',0 if 'o' in drop else 28*896)
    a('s_and_b32 s55, s2, 63'); a('s_mul_i32 s5, s55, %d'%(64*896)); srd(20,72,'s5',0 if 'o' in drop else 64*896)
    a('s_mov_b32 s56, 0xcccccccc'); a('s_mov_b32 s57, s56'); a('s_mov_b32 s58, 0xaaaaaaaa'); a('s_mov_b32 s59, s58')
    a('s_mov_b32 s64, 0x05040100'); a('s_mov_b32 s65, 0x07060302'); a('s_mov_b32 s66, 0x3db8aa3b')
    a('v_lshlrev_b32 v6, 1, v6')
    a('v_lshrrev_b32 v16, 3, v1'); a('v_mul_u32_u24 v17, 56, v3'); a('v_add_u32 v17, v17, v16')
    a('s_mul_i32 s5, s53, 896'); a('v_lshl_add_u32 v18, v17, 1, s5')
    a('v_mul_u32_u24 v17, 3584, v17'); a('v_and_b32 v19, 7, v1'); a('v_min_u32 v20, 6, v19'); a('v_lshl_add_u32 v17, v20, 3, v17')
    a('v_bfrev_b32 v5, v5'); a('v_lshrrev_b32 v5, 27, v5')
    stamp(2,1)
    a('s_cmp_ge_u32 s52, 4'); a('s_cbranch_scc1 L_noln')
    def red64(x,t):
        a('v_mov_b32 v%d, v%d'%(t,x)); a('v_permlane32_swap_b32 v%d, v%d'%(x,t)); a('v_add_f32 v%d, v%d, v%d'%(x,x,t)); red32('v_add_f32',x,t)
    a('v_mov_b32 v60, 0'); a('v_mov_b32 v62, 0'); a('s_mov_b32 exec_hi, 0x00ffffff')
    wait(mx)
    for k in range(4):
        a('v_lshlrev_b32 v%d, 16, v%d'%(24+2*k,96+k)); a('v_and_b32 v%d, 0xffff0000, v%d'%(25+2*k,96+k))
    a('v_pk_add_f32 v[32:33], v[24:25], v[26:27]'); a('v_pk_add_f32 v[34:35], v[28:29], v[30:31]'); a('v_pk_add_f32 v[32:33], v[32:33], v[34:35]')
    a('v_add_f32 v60, v32, v33'); a('s_mov_b32 exec_hi, -1'); red64(60,61)
    a('v_mul_f32 v60, 0xbb124925, v60'); a('v_mov_b32 v61, v60'); a('s_mov_b32 exec_hi, 0x00ffffff')
    for k in range(4): a('v_pk_add_f32 v[%d:%d], v[%d:%d], v[60:61]'%(32+2*k,33+2*k,24+2*k,25+2*k))
    a('v_pk_mul_f32 v[32:33], v[32:33], v[32:33]'); a('v_pk_mul_f32 v[34:35], v[34:35], v[34:35]')
    a('v_pk_fma_f32 v[32:33], v[36:37], v[36:37], v[32:33]'); a('v_pk_fma_f32 v[34:35], v[38:39], v[38:39], v[34:35]'); a('v_pk_add_f32 v[32:33], v[32:33], v[34:35]')
    a('v_add_f32 v62, v32, v33'); a('s_mov_b32 exec_hi, -1'); red64(62,63)
    a('v_mul_f32 v62, 0x3b124925, v62'); rb(62); rb(60)
    a('v_add_f32 v62, 0x3727c5ac, v62'); rb(62); a('v_sqrt_f32 v62, v62'); rb(62); a('v_rcp_f32 v63, v62')
    for k in range(8): a('v_add_f32 v%d, v60, v%d'%(24+k,24+k))
    for k in range(4): a('v_cvt_pk_bf16_f32 v%d, v%d, v%d'%(96+k,24+2*k,25+2*k))
    for k in range(4):
        a('v_lshlrev_b32 v%d, 16, v%d'%(24+2*k,96+k)); a('v_and_b32 v%d, 0xffff0000, v%d'%(25+2*k,96+k))
    for k in range(8): a('v_mul_f32 v%d, v63, v%d'%(32+k,24+k))
    for k in range(8): a('v_fma_f32 v%d, -v%d, v62, v%d'%(24+k,32+k,24+k))
    for k in range(8): a('v_fmac_f32 v%d, v%d, v63'%(32+k,24+k))
    for k in range(4): a('v_cvt_pk_bf16_f32 v%d, v%d, v%d'%(96+k,32+2*k,33+2*k))
    a('s_mov_b32 exec_hi, 0x00ffffff'); a('ds_write_b128 v4, v[96:99] offset:%d'%XN); a('s_mov_b32 exec_hi, -1'); lg()
    a('L_noln:'); a('s_barrier'); stamp(3,1)
    auto[0]=gap
    for b in range(4):
        a('ds_read_u16 v%d, v6 offset:%d'%(104+b,XN+896*b)); a('ds_read_u16 v%d, v6 offset:%d'%(108+b,XN+896*b+64))
    for k in range(7): a('ds_read_u16 v%d, v18 offset:%d'%(112+k,XN+16*k))
    stamp(4,1); wait(mq); stamp(5,1)
    for k in range(4):
        a('v_perm_b32 v%d, v%d, v%d, s64'%(96+2*k,56+k,52+k)); a('v_perm_b32 v%d, v%d, v%d, s65'%(97+2*k,56+k,52+k))
    lg()
    for b in range(4): a('v_lshl_or_b32 v%d, v%d, 16, v%d'%(104+b,108+b,104+b))
    for b in range(4):
        for c in range(8): a('v_dot2_f32_bf16 v%d, v%d, v%d, 0'%(64+8*b+c,96+c,104+b))
    for lv in range(5):
        for i in range(0,32,2<<lv): merge(lv,64+i,64+i+(1<<lv),96+(i>>lv+1))
    a('v_lshrrev_b32 v21, 3, v5'); a('v_lshlrev_b32 v21, 6, v21'); a('v_and_b32 v22, 7, v5'); a('v_lshl_add_u32 v21, v22, 2, v21')
    a('v_lshl_add_u32 v21, v23, 5, v21'); a('v_lshl_add_u32 v21, v3, 8, v21')
    a('ds_write_b32 v21, v64 offset:%d'%QP)
    auto[0]=0; wait(mclr); lg(); a('s_barrier')
    a('s_cmp_lg_u32 s52, 0'); a('s_cbranch_scc1 L_noq')
    a('v_lshlrev_b32 v21, 3, v1'); a('s_mov_b32 exec_hi, 0')
    for k in range(7): a('ds_read_b64 v[%d:%d], v21 offset:%d'%(64+2*k,65+2*k,QP+256*k))
    a('v_lshlrev_b32 v22, 13, v16'); a('v_lshl_add_u32 v22, v19, 2, v22')
    lg()
    for k in range(1,7): a('v_pk_add_f32 v[64:65], v[64:65], v[%d:%d]'%(64+2*k,65+2*k))
    a('v_cvt_pk_bf16_f32 v64, v64, v65')
    a('buffer_store_dword v64, v22, s[48:51], s6 offen sc1')
    a('s_mov_b64 exec, -1')
    a('L_noq:'); mst=cnt[0]; t0=nxt[0]; print('t0',t0)
    stamp(1)
    work={t:[] for t in range(burst,70)}
    st={}
    def W(t,f): work[t].append(f)
    def dep(t): return min(d1,depth+max(0,(t-t_up)//slope))
    def arrive():
        a('s_cmp_lg_u32 s52, 0'); a('s_cbranch_scc1 L_ar'); a('s_mov_b32 s79, 1'); wait(mst); a('s_atomic_add s79, s[84:85], 0'); a('L_ar:')
    W(t0+t_ar,arrive)
    t_gu=max(t_gu,t0)
    def gu_issue(k):
        def f():
            a('s_mov_b32 s5, %d'%(28672*k))
            vm('buffer_load_dwordx2 v[%d:%d], v17, s[24:27], s5 offen %s'%(24+2*k,25+2*k,wnt))
            st['gu']=vm('buffer_load_dwordx2 v[%d:%d], v17, s[28:31], s5 offen %s'%(38+2*k,39+2*k,wnt))
        return f
    for k in range(7): W(t_gu+k,gu_issue(k))
    def gu_comp():
        for k in range(7): a('v_lshlrev_b32 v%d, 16, v%d'%(112+k,112+k))
        wait(st['gu'])
        for m in range(2):
            for k in range(7):
                for j in range(2):
                    r=24+14*m+2*k+j
                    a('v_lshlrev_b32 v60, 16, v%d'%r); a('v_and_b32 v61, 0xffff0000, v%d'%r)
                    for e in range(2):
                        d=64+4*m+2*j+e
                        a(('v_mul_f32' if k==0 else 'v_fmac_f32')+' v%d, v%d, v%d'%(d,60+e,112+k))
        for d in range(4):
            a('v_permlane32_swap_b32 v%d, v%d'%(64+d,68+d)); a('v_add_f32 v%d, v%d, v%d'%(64+d,64+d,68+d))
        for d in range(4): dpp('v_add_f32',64+d,64+d,64+d,'row_ror:8')
        for d in range(4):
            a('v_mov_b32 v%d, v%d'%(68+d,64+d))
        for d in range(4):
            a('v_permlane16_swap_b32 v%d, v%d'%(64+d,68+d)); a('v_add_f32 v%d, v%d, v%d'%(64+d,64+d,68+d))
        a('v_lshlrev_b32 v60, 8, v3'); a('v_lshl_add_u32 v60, v23, 7, v60'); a('v_lshl_add_u32 v60, v19, 4, v60')
        a('ds_write_b128 v60, v[64:67] offset:%d'%GU)
    W(t_gu+7+depth,gu_comp)
    assert t_gu+7+depth<=t_poll+8
    PL='buffer_load_dword v21, off, s[44:47], 0 sc1'
    def poll1():
        a('s_cmp_lg_u32 s52, 0'); a('s_cbranch_scc1 L_p1'); a(PL); a('L_p1:'); st['p']=cnt[0]
    def poll2():
        a('s_cmp_lg_u32 s52, 0'); a('s_cbranch_scc1 L_p2'); wait(st['p'])
        a('s_mov_b32 s61, 20000'); a('L_p2c:'); a('v_readfirstlane_b32 s5, v21'); a('s_cmp_ge_u32 s5, 256'); a('s_cbranch_scc1 L_p2d')
        a('s_sub_u32 s61, s61, 1'); a('s_cbranch_scc1 L_p2d'); a(PL); a('s_waitcnt vmcnt(0)'); a('s_branch L_p2c')
        a('L_p2d:'); a('s_lshl_b32 s5, s3, 10')
        a('buffer_load_dwordx4 v[8:11], v2, s[48:51], s5 offen sc1'); a('L_p2:'); st['p']=cnt[0]
    def poll3():
        a('s_cmp_lg_u32 s52, 0'); a('s_cbranch_scc1 L_p3'); wait(st['p'])
        a('ds_write_b128 v2, v[8:11] offset:%d'%QB); a('L_p3:')
        lg(); a('s_barrier'); stamp(2)
        a('v_and_b32 v60, 31, v1'); a('v_lshlrev_b32 v60, 4, v60')
        a('ds_read_b128 v[8:11], v60 offset:%d'%QB); a('ds_read_b128 v[12:15], v60 offset:%d'%(QB+512)); lg()
    W(t_poll,poll1); W(t_poll+4,poll2); W(t_poll+8,poll3)
    tq=t_poll+8
    stack=[[],[]]; pool=list(range(64,96))
    def kpair(i):
        def f():
            wait(ms[i+1])
            r=[[pool.pop(0),pool.pop(0)] for h in range(2)]
            for k in range(4):
                for e in range(2):
                    for h in range(2):
                        a('v_dot2_f32_bf16 v%d, v%d, v%d, %s'%(r[h][e],slot(i+e)+k,8+4*h+k,'0' if k==0 else 'v%d'%r[h][e]))
            for h in range(2):
                merge(0,r[h][0],r[h][1],60); pool.append(r[h][1]); stack[h].append((1,r[h][0]))
            while len(stack[0])>1 and stack[0][-1][0]==stack[0][-2][0]:
                for h in range(2):
                    lv,y=stack[h].pop(); _,x=stack[h].pop(); merge(lv,x,y,60+h); pool.append(y); stack[h].append((lv+1,x))
        return f
    t=tq; n=0
    for i in range(0,32,2):
        while i+1>t-dep(t) or n>=kpt: t+=1; n=0
        W(t,kpair(i)); n+=1
        if i<16: assert t<32+i
    tk=t
    def soft():
        r0=stack[0][0][1]; r1=stack[1][0][1]
        a('v_cvt_pk_bf16_f32 v60, v%d, v%d'%(r0,r1)); a('v_lshlrev_b32 v8, 16, v60'); a('v_and_b32 v9, 0xffff0000, v60')
        a('v_mov_b32 v10, v8'); a('v_mov_b32 v11, v9'); a('v_permlane32_swap_b32 v10, v11'); a('v_max_f32 v10, v10, v11'); red32('v_max_f32',10,11)
        a('v_lshlrev_b32 v12, 2, v3'); a('v_lshl_add_u32 v12, v23, 5, v12')
        a('ds_write_b32 v12, v10 offset:%d'%MX); lg(); a('s_barrier')
        a('v_mov_b32 v13, 0')
        for k in range(4): a('ds_read_b128 v[%d:%d], v13 offset:%d'%(64+4*k,67+4*k,MX+16*k))
        lg()
        for h in range(2):
            b=64+8*h; a('v_max3_f32 v%d, v%d, v%d, v%d'%(b,b,b+1,b+2)); a('v_max3_f32 v%d, v%d, v%d, v%d'%(b+3,b+3,b+4,b+5))
            a('v_max3_f32 v%d, v%d, v%d, v%d'%(b,b,b+6,b+7)); a('v_max_f32 v%d, v%d, v%d'%(88+2*h,b,b+3))
        for h in range(2):
            a('v_sub_f32 v%d, v%d, v%d'%(8+h,8+h,88+2*h)); a('v_mul_f32 v%d, s66, v%d'%(8+h,8+h)); a('v_exp_f32 v%d, v%d'%(8+h,8+h))
        a('v_cvt_pk_bf16_f32 v60, v8, v9')
        a('v_lshlrev_b32 v13, 8, v3'); a('v_lshl_add_u32 v13, v23, 7, v13'); a('v_lshl_add_u32 v14, v5, 1, v13')
        a('ds_write_b16 v14, v60 offset:%d'%PP); a('ds_write_b16_d16_hi v14, v60 offset:%d'%(PP+64))
        for k in range(8): a('ds_read_b128 v[%d:%d], v13 offset:%d'%(96+4*k,99+4*k,PP+16*k))
        a('v_permlane32_swap_b32 v8, v9'); a('v_add_f32 v8, v8, v9'); red32('v_add_f32',8,9)
        a('ds_write_b32 v12, v8 offset:%d'%LS); lg(); stamp(3)
    W(tk,soft)
    def vpair(i):
        def f():
            wait(ms[i+1]); j=(i-32)//2; A=slot(i); B=slot(i+1)
            for k in range(4):
                a('v_perm_b32 v%d, v%d, v%d, s64'%(80+2*k,B+k,A+k)); a('v_perm_b32 v%d, v%d, v%d, s65'%(81+2*k,B+k,A+k))
            for d in range(8):
                for h in range(2): a('v_dot2_f32_bf16 v%d, v%d, v%d, %s'%(64+8*h+d,80+d,96+16*h+j,'0' if j==0 else 'v%d'%(64+8*h+d)))
        return f
    for i in range(32,64,2):
        t=i+1
        while t<64 and t-dep(t)<i+1: t+=1
        t=max(tk,t); assert t<i+16 or i+16>63; W(t,vpair(i))
    def mlpub():
        a('s_barrier'); a('s_cmp_lg_u32 s52, 0'); a('s_cbranch_scc1 L_ml'); a('v_mov_b32 v13, 0')
        for k in range(4): a('ds_read_b128 v[%d:%d], v13 offset:%d'%(24+4*k,27+4*k,LS+16*k))
        lg()
        for h in range(2):
            b=24+8*h
            for k in (2,4,6): a('v_pk_add_f32 v[%d:%d], v[%d:%d], v[%d:%d]'%(b,b+1,b,b+1,b+k,b+k+1))
            a('v_add_f32 v%d, v%d, v%d'%(89+2*h,b,b+1))
        a('s_mov_b64 exec, 1'); a('buffer_store_dwordx4 v[88:91], off, s[48:51], s62 offset:2048 sc1'); a('s_mov_b64 exec, -1'); a('L_ml:')
    W(tk+2,mlpub)
    t_wd=max(t_wd,tk+1); t_wo=max(t_wo,tk+1)
    def wd_issue():
        a('v_mul_u32_u24 v40, 3584, v3'); a('v_lshlrev_b32 v41, 4, v1'); a('v_cmp_gt_u32 vcc, 56, v1'); a('v_mov_b32 v42, 0x40000000'); a('v_cndmask_b32 v41, v42, v41, vcc')
        a('v_lshl_add_u32 v43, v40, 1, v41'); a('v_add_u32 v44, 3584, v43'); a('v_add_u32 v41, v40, v41')
        for r in range(4): st['wd']=vm('buffer_load_dwordx4 v[%d:%d], v41, s[32:35], 0 offen offset:%d %s'%(232+4*r,235+4*r,896*r,ont))
    W(t_wd,wd_issue)
    def wd_comp():
        a('v_lshlrev_b32 v45, 8, v19'); a('v_lshl_add_u32 v45, v3, 4, v45')
        a('ds_read_b128 v[24:27], v45 offset:%d'%GU); a('ds_read_b128 v[28:31], v45 offset:%d'%(GU+128)); lg()
        for c in (Q1,Q2,HM):
            for d in range(8): dpp('v_add_f32',24+d,24+d,24+d,c)
        for d in range(8): rb(24+d)
        for d in range(4): a('v_mul_f32 v%d, 0xbfb8aa3b, v%d'%(32+d,24+d))
        for d in range(4): a('v_exp_f32 v%d, v%d'%(32+d,32+d))
        for d in range(4): a('v_add_f32 v%d, 1.0, v%d'%(32+d,32+d))
        for d in range(4): a('v_rcp_f32 v%d, v%d'%(32+d,32+d))
        for d in range(4): a('v_mul_f32 v%d, v%d, v%d'%(24+d,24+d,32+d))
        for d in range(4): rb(24+d)
        for d in range(4): a('v_mul_f32 v%d, v%d, v%d'%(24+d,24+d,28+d))
        a('v_cvt_pk_bf16_f32 v24, v24, v25'); a('v_cvt_pk_bf16_f32 v25, v26, v27')
        wait(st['wd'])
        for p in range(2):
            for k in range(4):
                A=232+8*p+k; a('v_perm_b32 v%d, v%d, v%d, s64'%(28+2*k,A+4,A)); a('v_perm_b32 v%d, v%d, v%d, s65'%(29+2*k,A+4,A))
            for d in range(8): a('v_dot2_f32_bf16 v%d, v%d, v%d, %s'%(48+d,28+d,24+p,'0' if p==0 else 'v%d'%(48+d)))
    W(max(t_wd+dep(t_wd)+1,tk+3),wd_comp)
    def wo_issue(p):
        def f():
            for r in (2*p,2*p+1): st['wo']=vm('buffer_load_dwordx4 v[%d:%d], v%d, s[20:23], 0 offen offset:%d %s'%(200+4*r,203+4*r,43+(r>>2),896*(r&3),ont))
        return f
    def wo_perm():
        wait(st['wo'])
        for p in range(4):
            for k in range(4):
                A=200+8*p+k; a('v_perm_b32 v%d, v%d, v%d, s64'%(192+8*p+2*k,A+4,A)); a('v_perm_b32 v%d, v%d, v%d, s65'%(193+8*p+2*k,A+4,A))
    late = t_wo>=63
    for p in range(4): W(min(63,t_wo+2*p),wo_issue(p))
    if not late: W(min(64,t_wo+7+dep(t_wo+7)),wo_perm)
    ML='buffer_load_dwordx2 v[24:25], v26, s[48:51], s67 offen offset:2048 sc1'
    def ml1():
        a('s_lshl_b32 s67, s3, 15'); a('s_add_u32 s67, s67, %d'%REC1); a('s_lshr_b32 s5, s4, 2'); a('s_lshl_b32 s5, s5, 3')
        a('v_lshl_add_u32 v26, v19, 12, s5'); st['ml']=vm(ML)
        a('s_lshl_b32 s5, s4, 8'); a('v_lshlrev_b32 v27, 12, v19'); a('v_lshl_add_u32 v27, v16, 2, v27'); a('v_lshl_add_u32 v27, v3, 5, v27'); a('v_add_u32 v27, s5, v27')
        a('v_mul_u32_u24 v28, %d, v3'%WS); a('v_lshl_add_u32 v28, v1, 4, v28')
        a('v_and_b32 v29, 3, v1'); a('v_mul_u32_u24 v29, %d, v29'%(2*WS)); a('v_bfe_u32 v30, v1, 2, 1'); a('v_mul_u32_u24 v30, %d, v30'%DH); a('v_add_u32 v29, v29, v30')
        a('v_lshl_add_u32 v29, v16, 4, v29'); a('v_lshl_add_u32 v29, v3, 7, v29')
        a('v_lshlrev_b32 v30, 2, v0')
        a('s_lshl_b32 s68, s53, 17'); a('s_add_u32 s68, s68, %d'%REC2); a('s_lshl_b32 s5, s55, 7'); a('s_add_u32 s68, s68, s5')
        a('v_lshlrev_b32 v31, 11, v19'); a('v_lshl_add_u32 v31, v16, 4, v31')
        a('s_mul_i32 s5, s53, 896'); a('s_lshl_b32 s7, s55, 6'); a('s_add_u32 s5, s5, s7'); a('v_lshl_add_u32 v32, v16, 3, s5')
        for k in range(1,8): a('s_add_u32 s%d, s68, %d'%(68+k,16384*k))
        vm('buffer_load_dwordx2 v[34:35], v32, s[36:39], 0 offen')
    def ml2():
        wait(st['ml']); spin('L_mls',[ML],[24,25])
        a('v_mov_b32 v36, v24')
        for c in (Q1,Q2,HM): dpp('v_max_f32',36,36,36,c)
        a('v_sub_f32 v24, v24, v36'); a('v_mul_f32 v24, s66, v24'); a('v_exp_f32 v24, v24'); a('v_mul_f32 v25, v24, v25')
        for c in (Q1,Q2,HM): dpp('v_add_f32',25,25,25,c)
        a('v_rcp_f32 v25, v25'); a('v_mul_f32 v33, v24, v25')
    W(t_ml,ml1); W(min(63,t_ml+dep(t_ml)+1),ml2)
    for t in range(t0,65):
        if t<64:
            if t-dep(t)>=0: wait(ms[t-dep(t)])
            issue(t)
        for f in work[t]: f()
    for t in range(65,70): assert not work[t]
    stamp(4)
    def xred(base,src,soff,lab):
        a('ds_write_b128 v28, v[%d:%d] offset:%d'%(src,src+3,base)); a('ds_write_b128 v28, v[%d:%d] offset:%d'%(src+4,src+7,base+DH))
        lg(); a('s_barrier')
        if lab: a('s_cmp_eq_u32 s52, 7'); a('s_cbranch_scc1 '+lab)
        a('ds_read_b128 v[80:83], v29 offset:%d'%base); a('ds_read_b128 v[84:87], v29 offset:%d'%(base+WS)); lg()
        a('v_pk_add_f32 v[80:81], v[80:81], v[84:85]'); a('v_pk_add_f32 v[82:83], v[82:83], v[86:87]')
        for c in (Q1,Q2):
            for d in range(4): dpp('v_add_f32',80+d,80+d,80+d,c)
        a('s_mov_b32 exec_lo, 0x11111111'); a('s_mov_b32 exec_hi, 0x11111111')
        a('buffer_store_dwordx4 v[80:83], v30, s[48:51], %s offen sc1'%soff)
    for d in range(8): a('v_permlane32_swap_b32 v%d, v%d'%(64+d,72+d))
    for d in range(0,8,2): a('v_pk_add_f32 v[%d:%d], v[%d:%d], v[%d:%d]'%(64+d,65+d,64+d,65+d,72+d,73+d))
    xred(OR,64,'s62',None)
    a('s_mov_b64 exec, -1')
    OL='buffer_load_dword v24, v27, s[48:51], s67 offen sc1'
    a(OL)
    if late: cnt[0]+=2; wo_perm()
    a('s_waitcnt vmcnt(0)'); spin('L_os',[OL],[24])
    stamp(5)
    a('v_mul_f32 v24, v24, v33')
    for c in (Q1,Q2,HM): dpp('v_add_f32',24,24,24,c)
    a('v_mov_b32_dpp v25, v24 row_ror:8 row_mask:0xf bank_mask:0xf'); a('v_cvt_pk_bf16_f32 v24, v24, v25')
    for p in range(4): a('v_readlane_b32 s%d, v24, %d'%(76+p,16*p))
    for p in range(4):
        for d in range(8): a('v_dot2_f32_bf16 v%d, v%d, s%d, v%d'%(48+d,192+8*p+d,76+p,48+d))
    xred(OP,48,'s63','L_fin')
    a('s_branch L_done')
    a('L_fin:')
    a('s_cmp_ge_u32 s55, 14'); a('s_cbranch_scc1 L_done')
    FL=['buffer_load_dwordx4 v[%d:%d], v31, s[48:51], s%d offen sc1'%(96+4*k,99+4*k,68+k) for k in range(8)]
    for l in FL: a(l)
    a('s_waitcnt vmcnt(0)'); spin('L_fs',FL,list(range(96,128)))
    for s in (16,8,4):
        for k in range(0,s,2): a('v_pk_add_f32 v[%d:%d], v[%d:%d], v[%d:%d]'%(96+k,97+k,96+k,97+k,96+s+k,97+s+k))
    a('v_lshlrev_b32 v36, 16, v34'); a('v_and_b32 v37, 0xffff0000, v34'); a('v_lshlrev_b32 v38, 16, v35'); a('v_and_b32 v39, 0xffff0000, v35')
    for c in (Q1,Q2,HM):
        for d in range(4): dpp('v_add_f32',96+d,96+d,96+d,c)
    a('v_pk_add_f32 v[96:97], v[96:97], v[36:37]'); a('v_pk_add_f32 v[98:99], v[98:99], v[38:39]')
    a('v_cvt_pk_bf16_f32 v96, v96, v97'); a('v_cvt_pk_bf16_f32 v97, v98, v99')
    a('s_mov_b32 exec_lo, 0x01010101'); a('s_mov_b32 exec_hi, 0x01010101')
    a('buffer_store_dwordx2 v[96:97], v32, s[40:43], 0 offen')
    a('L_done:')
    if stamps:
        stamp(6); a('s_getreg_b32 s97, hwreg(HW_REG_XCC_ID)'); srd(8,86,'0x20000000',1<<20)
        a('s_lshl_b32 s5, s2, 3'); a('s_add_u32 s5, s5, s52'); a('s_lshl_b32 s5, s5, 5'); a('s_mov_b64 exec, 1')
        for k in range(8): a('v_mov_b32 v%d, s%d'%(8+k,90+k))
        a('buffer_store_dwordx4 v[8:11], off, s[8:11], s5'); a('buffer_store_dwordx4 v[12:15], off, s[8:11], s5 offset:16')
    a('L_end:')
    ref=open('parallel_sum__sliding_block_cached__swiglu_ffn__decode.s.ref').read().split('\n')
    i0=[i for i,l in enumerate(ref) if l.startswith(KN+':')][0]; i1=[i for i,l in enumerate(ref) if l.startswith('s_endpgm')][0]
    hdr=['; @launch grid=(256,1,1) block=(512,1,1) lds=%d'%LDS if l.startswith('; @launch') else l for l in ref[:i0+1]]
    body=[l if l.endswith(':') else '    '+l for l in pad(L)]
    return '\n'.join(hdr+body+ref[i1:])
if __name__=='__main__':
    from asm import build
    name=sys.argv[1]; kw=eval('dict(%s)'%(sys.argv[2] if len(sys.argv)>2 else ''))
    open(name+'.s','w').write(gen(**kw)); build(name+'.s',name+'.co'); print('ok',LDS)
```

```python
import sys
sys.path.insert(0,'exp'); sys.path.insert(0,'k')
from hz import pad
KN="parallel_sum__sliding_block_cached__swiglu_ffn__decode_kernel"
XN=0; QP=4096; QB=6144; GU=7168; MX=9216; LS=9280; PP=9472; OR=12288; WS=2320; DH=1152; OP=OR+8*WS; LDS=OP+8*WS
REC1=0x10000; REC2=0x200000
def gen(depth=4, burst=4, nt='nt', wnt='nt', stamps=False, t_gu=8, t_poll=21, t_wd=34, t_wo=40, t_ml=52, pf=1, gap=1000, hold=0, d1=4, t_up=40, slope=1, kpt=3, ont='nt', drop='', bar0=1, pro=0, xnt='', qnt='nt', t_ar=2):
    L=[]; auto=[0]; acc=[0]; nxt=[burst]
    def a(x):
        L.append(x)
        if auto[0] and x.startswith('v_'):
            acc[0]+=1
            if acc[0]>=auto[0]: acc[0]=0; issue(nxt[0]); nxt[0]+=1
    cnt=[0]
    def vm(s): a(s); cnt[0]+=1; return cnt[0]
    def wait(m): a('s_waitcnt vmcnt(%d)'%min(63,cnt[0]-m))
    def lg(): a('s_waitcnt lgkmcnt(0)')
    def stamp(k,p=0):
        if stamps and (p==pro or k in (1,6)): a('s_memrealtime s[88:89]'); lg(); a('s_mov_b32 s%d, s88'%(90+k))
    def srd(d,b,off,n):
        if off is None: a('s_mov_b32 s%d, s%d'%(d,b)); a('s_mov_b32 s%d, s%d'%(d+1,b+1))
        else: a('s_add_u32 s%d, s%d, %s'%(d,b,off)); a('s_addc_u32 s%d, s%d, 0'%(d+1,b+1))
        a('s_mov_b32 s%d, %s'%(d+2,n)); a('s_mov_b32 s%d, 0x20000'%(d+3))
    def rb(v): a('v_cvt_pk_bf16_f32 v%d, v%d, v%d'%(v,v,v)); a('v_and_b32 v%d, 0xffff0000, v%d'%(v,v))
    def dpp(op,d,s0,s1,ctl,bank=0xf): a('%s_dpp v%d, v%d, v%d %s row_mask:0xf bank_mask:0x%x'%(op,d,s0,s1,ctl,bank))
    Q1='quad_perm:[1,0,3,2]'; Q2='quad_perm:[2,3,0,1]'; HM='row_half_mirror'
    def merge(lv,x,y,t):
        if lv==0: a('v_permlane16_swap_b32 v%d, v%d'%(x,y)); a('v_add_f32 v%d, v%d, v%d'%(x,x,y))
        elif lv==1: dpp('v_add_f32',x,x,x,'row_ror:8',0x3); dpp('v_add_f32',x,y,y,'row_ror:8',0xc)
        elif lv==2: dpp('v_add_f32',x,x,x,HM,0x5); dpp('v_add_f32',x,y,y,HM,0xa)
        else:
            m='s[56:57]' if lv==3 else 's[58:59]'
            a('v_cndmask_b32 v%d, v%d, v%d, %s'%(t,y,x,m)); a('v_cndmask_b32 v%d, v%d, v%d, %s'%(x,x,y,m))
            dpp('v_add_f32',x,t,x,Q2 if lv==3 else Q1)
    def red32(op,x,t):
        for c in ('row_ror:8','row_ror:4','row_ror:2','row_ror:1'): dpp(op,x,x,x,c)
        a('v_mov_b32 v%d, v%d'%(t,x)); a('v_permlane16_swap_b32 v%d, v%d'%(x,t)); a('%s v%d, v%d, v%d'%(op,x,x,t))
    def spin(name,load,rs):
        a('s_mov_b32 s61, 20000')
        a(name+'_c:')
        chk(rs); a('s_cbranch_vccz %s_d'%name)
        a('s_sub_u32 s61, s61, 1'); a('s_cbranch_scc1 %s_d'%name)
        for l in load: a(l)
        a('s_waitcnt vmcnt(0)'); a('s_branch %s_c'%name)
        a(name+'_d:')
    def chk(rs):
        if len(rs)==1: a('v_cmp_eq_u32 vcc, -1, v%d'%rs[0]); return
        a('v_max_u32 v7, v%d, v%d'%(rs[0],rs[1]))
        for k in range(2,len(rs),2): a('v_max3_u32 v7, v7, v%d, v%d'%(rs[k],rs[k+1]))
        a('v_cmp_eq_u32 vcc, -1, v7')
    a('s_cmp_ge_u32 s2, 256'); a('s_cbranch_scc1 L_end')
    a('s_load_dwordx16 s[64:79], s[0:1], 0'); a('s_load_dwordx8 s[80:87], s[0:1], 64')
    if stamps: a('s_memrealtime s[88:89]')
    if pf:
        a('s_getpc_b64 s[4:5]'); a('v_lshlrev_b32 v46, 6, v0'); a('v_min_u32 v46, L_end-%s-64, v46'%KN); vm('global_load_dword v47, v46, s[4:5]')
    a('v_and_b32 v1, 63, v0'); a('v_lshrrev_b32 v3, 6, v0'); a('v_readfirstlane_b32 s52, v3'); a('v_lshlrev_b32 v2, 4, v0')
    a('s_lshr_b32 s3, s2, 3'); a('s_and_b32 s4, s2, 7')
    a('s_lshl_b32 s5, s3, 23'); a('s_lshl_b32 s6, s4, 18'); a('s_add_u32 s5, s5, s6'); a('s_add_u32 s5, s5, %d'%(12288*512))
    a('s_lshl_b32 s6, s4, 5'); a('s_add_u32 s6, s6, s3'); a('s_lshl_b32 s6, s6, 5')
    a('s_sub_u32 s7, %d, s6'%(448*8192))
    a('s_lshr_b32 s53, s2, 6')
    a('v_mul_u32_u24 v4, 896, v3'); a('v_lshl_add_u32 v4, v1, 4, v4')
    a('v_and_b32 v5, 31, v1'); a('v_lshl_add_u32 v6, v3, 6, v5')
    a('v_lshlrev_b32 v22, 13, v6'); a('v_lshrrev_b32 v23, 5, v1'); a('v_lshl_add_u32 v22, v23, 4, v22')
    a('s_mov_b32 s54, 0x40000'); a('s_mov_b32 s60, 0')
    lg()
    if stamps: a('s_mov_b32 s90, s88')
    srd(36,64,None,3584); srd(16,70,'s6',0 if 'q' in drop else 's7'); srd(8,66,'s5',1<<18); srd(48,86,None,0x400000)
    mx=vm('buffer_load_dwordx4 v[96:99], v4, s[36:39], 0 offen '+xnt)
    vm('buffer_load_dwordx4 v[52:55], v22, s[16:19], 0 offen '+qnt)
    mq=vm('buffer_load_dwordx4 v[56:59], v22, s[16:19], s54 offen '+qnt)
    a('s_lshl_b32 s62, s2, 12'); a('s_add_u32 s62, s62, %d'%REC1)
    a('s_lshl_b32 s63, s2, 11'); a('s_add_u32 s63, s63, %d'%REC2)
    a('s_cmp_lg_u32 s52, 7'); a('s_cbranch_scc1 L_noclr')
    for k in range(4): a('v_mov_b32 v%d, -1'%(60+k))
    a('v_lshlrev_b32 v64, 4, v1')
    for o in (0,1024,2048): a('buffer_store_dwordx4 v[60:63], v64, s[48:51], s62 offen offset:%d sc1'%o)
    for o in (0,1024): a('buffer_store_dwordx4 v[60:63], v64, s[48:51], s63 offen offset:%d sc1'%o)
    a('L_noclr:')
    mclr=cnt[0]
    ms={}
    def slot(t): return 128+4*(t if t<32 else (t-32)%16)
    def issue(t):
        if t==32: a('s_mov_b32 s60, 0')
        ms[t]=vm('buffer_load_dwordx4 v[%d:%d], v2, s[%d:%d], s60 offen %s'%(slot(t),slot(t)+3,8 if t<32 else 12,11 if t<32 else 15,nt))
        a('s_add_u32 s60, s60, 0x2000')
    if bar0: a('s_barrier')
    for t in range(burst): issue(t)
    srd(12,68,'s5',1<<18); srd(44,84,None,256); srd(40,82,None,3584)
    a('s_and_b32 s5, s3, 7'); a('s_lshl_b32 s55, s4, 3'); a('s_add_u32 s55, s55, s5')
    a('s_mul_i32 s5, s55, 56'); srd(24,76,'s5',0 if 'g' in drop else 448*3584); srd(28,78,'s5',0 if 'g' in drop else 448*3584)
    a('s_mul_i32 s5, s55, %d'%(28*896)); srd(32,80,'s5',0 if 'o' in drop else 28*896)
    a('s_and_b32 s55, s2, 63'); a('s_mul_i32 s5, s55, %d'%(64*896)); srd(20,72,'s5',0 if 'o' in drop else 64*896)
    a('s_mov_b32 s56, 0xcccccccc'); a('s_mov_b32 s57, s56'); a('s_mov_b32 s58, 0xaaaaaaaa'); a('s_mov_b32 s59, s58')
    a('s_mov_b32 s64, 0x05040100'); a('s_mov_b32 s65, 0x07060302'); a('s_mov_b32 s66, 0x3db8aa3b')
    a('v_lshlrev_b32 v6, 1, v6')
    a('v_lshrrev_b32 v16, 3, v1'); a('v_mul_u32_u24 v17, 56, v3'); a('v_add_u32 v17, v17, v16')
    a('s_mul_i32 s5, s53, 896'); a('v_lshl_add_u32 v18, v17, 1, s5')
    a('v_mul_u32_u24 v17, 3584, v17'); a('v_and_b32 v19, 7, v1'); a('v_min_u32 v20, 6, v19'); a('v_lshl_add_u32 v17, v20, 3, v17')
    a('v_bfrev_b32 v5, v5'); a('v_lshrrev_b32 v5, 27, v5')
    stamp(2,1)
    a('s_cmp_ge_u32 s52, 4'); a('s_cbranch_scc1 L_noln')
    def red64(x,t):
        a('v_mov_b32 v%d, v%d'%(t,x)); a('v_permlane32_swap_b32 v%d, v%d'%(x,t)); a('v_add_f32 v%d, v%d, v%d'%(x,x,t)); red32('v_add_f32',x,t)
    a('v_mov_b32 v60, 0'); a('v_mov_b32 v62, 0'); a('s_mov_b32 exec_hi, 0x00ffffff')
    wait(mx)
    for k in range(4):
        a('v_lshlrev_b32 v%d, 16, v%d'%(24+2*k,96+k)); a('v_and_b32 v%d, 0xffff0000, v%d'%(25+2*k,96+k))
    a('v_pk_add_f32 v[32:33], v[24:25], v[26:27]'); a('v_pk_add_f32 v[34:35], v[28:29], v[30:31]'); a('v_pk_add_f32 v[32:33], v[32:33], v[34:35]')
    a('v_add_f32 v60, v32, v33'); a('s_mov_b32 exec_hi, -1'); red64(60,61)
    a('v_mul_f32 v60, 0xbb124925, v60'); a('v_mov_b32 v61, v60'); a('s_mov_b32 exec_hi, 0x00ffffff')
    for k in range(4): a('v_pk_add_f32 v[%d:%d], v[%d:%d], v[60:61]'%(32+2*k,33+2*k,24+2*k,25+2*k))
    a('v_pk_mul_f32 v[32:33], v[32:33], v[32:33]'); a('v_pk_mul_f32 v[34:35], v[34:35], v[34:35]')
    a('v_pk_fma_f32 v[32:33], v[36:37], v[36:37], v[32:33]'); a('v_pk_fma_f32 v[34:35], v[38:39], v[38:39], v[34:35]'); a('v_pk_add_f32 v[32:33], v[32:33], v[34:35]')
    a('v_add_f32 v62, v32, v33'); a('s_mov_b32 exec_hi, -1'); red64(62,63)
    a('v_mul_f32 v62, 0x3b124925, v62'); rb(62); rb(60)
    a('v_add_f32 v62, 0x3727c5ac, v62'); rb(62); a('v_sqrt_f32 v62, v62'); rb(62); a('v_rcp_f32 v63, v62')
    for k in range(8): a('v_add_f32 v%d, v60, v%d'%(24+k,24+k))
    for k in range(4): a('v_cvt_pk_bf16_f32 v%d, v%d, v%d'%(96+k,24+2*k,25+2*k))
    for k in range(4):
        a('v_lshlrev_b32 v%d, 16, v%d'%(24+2*k,96+k)); a('v_and_b32 v%d, 0xffff0000, v%d'%(25+2*k,96+k))
    for k in range(8): a('v_mul_f32 v%d, v63, v%d'%(32+k,24+k))
    for k in range(8): a('v_fma_f32 v%d, -v%d, v62, v%d'%(24+k,32+k,24+k))
    for k in range(8): a('v_fmac_f32 v%d, v%d, v63'%(32+k,24+k))
    for k in range(4): a('v_cvt_pk_bf16_f32 v%d, v%d, v%d'%(96+k,32+2*k,33+2*k))
    a('s_mov_b32 exec_hi, 0x00ffffff'); a('ds_write_b128 v4, v[96:99] offset:%d'%XN); a('s_mov_b32 exec_hi, -1'); lg()
    a('L_noln:'); a('s_barrier'); stamp(3,1)
    auto[0]=gap
    for b in range(4):
        a('ds_read_u16 v%d, v6 offset:%d'%(104+b,XN+896*b)); a('ds_read_u16 v%d, v6 offset:%d'%(108+b,XN+896*b+64))
    for k in range(7): a('ds_read_u16 v%d, v18 offset:%d'%(112+k,XN+16*k))
    stamp(4,1); wait(mq); stamp(5,1)
    for k in range(4):
        a('v_perm_b32 v%d, v%d, v%d, s64'%(96+2*k,56+k,52+k)); a('v_perm_b32 v%d, v%d, v%d, s65'%(97+2*k,56+k,52+k))
    lg()
    for b in range(4): a('v_lshl_or_b32 v%d, v%d, 16, v%d'%(104+b,108+b,104+b))
    for b in range(4):
        for c in range(8): a('v_dot2_f32_bf16 v%d, v%d, v%d, 0'%(64+8*b+c,96+c,104+b))
    for lv in range(5):
        for i in range(0,32,2<<lv): merge(lv,64+i,64+i+(1<<lv),96+(i>>lv+1))
    a('v_lshrrev_b32 v21, 3, v5'); a('v_lshlrev_b32 v21, 6, v21'); a('v_and_b32 v22, 7, v5'); a('v_lshl_add_u32 v21, v22, 2, v21')
    a('v_lshl_add_u32 v21, v23, 5, v21'); a('v_lshl_add_u32 v21, v3, 8, v21')
    a('ds_write_b32 v21, v64 offset:%d'%QP)
    auto[0]=0; wait(mclr); lg(); a('s_barrier')
    a('s_cmp_lg_u32 s52, 0'); a('s_cbranch_scc1 L_noq')
    a('v_lshlrev_b32 v21, 3, v1'); a('s_mov_b32 exec_hi, 0')
    for k in range(7): a('ds_read_b64 v[%d:%d], v21 offset:%d'%(64+2*k,65+2*k,QP+256*k))
    a('v_lshlrev_b32 v22, 13, v16'); a('v_lshl_add_u32 v22, v19, 2, v22')
    lg()
    for k in range(1,7): a('v_pk_add_f32 v[64:65], v[64:65], v[%d:%d]'%(64+2*k,65+2*k))
    a('v_cvt_pk_bf16_f32 v64, v64, v65')
    a('buffer_store_dword v64, v22, s[48:51], s6 offen sc1')
    a('s_mov_b64 exec, -1')
    a('L_noq:'); mst=cnt[0]; t0=nxt[0]; print('t0',t0)
    stamp(1)
    work={t:[] for t in range(burst,70)}
    st={}
    def W(t,f): work[t].append(f)
    def dep(t): return min(d1,depth+max(0,(t-t_up)//slope))
    def arrive():
        a('s_cmp_lg_u32 s52, 0'); a('s_cbranch_scc1 L_ar'); a('s_mov_b32 s79, 1'); wait(mst); a('s_atomic_add s79, s[84:85], 0'); a('L_ar:')
    W(t0+t_ar,arrive)
    t_gu=max(t_gu,t0)
    def gu_issue(k):
        def f():
            a('s_mov_b32 s5, %d'%(28672*k))
            vm('buffer_load_dwordx2 v[%d:%d], v17, s[24:27], s5 offen %s'%(24+2*k,25+2*k,wnt))
            st['gu']=vm('buffer_load_dwordx2 v[%d:%d], v17, s[28:31], s5 offen %s'%(38+2*k,39+2*k,wnt))
        return f
    for k in range(7): W(t_gu+k,gu_issue(k))
    def gu_comp():
        for k in range(7): a('v_lshlrev_b32 v%d, 16, v%d'%(112+k,112+k))
        wait(st['gu'])
        for m in range(2):
            for k in range(7):
                for j in range(2):
                    r=24+14*m+2*k+j
                    a('v_lshlrev_b32 v60, 16, v%d'%r); a('v_and_b32 v61, 0xffff0000, v%d'%r)
                    for e in range(2):
                        d=64+4*m+2*j+e
                        a(('v_mul_f32' if k==0 else 'v_fmac_f32')+' v%d, v%d, v%d'%(d,60+e,112+k))
        for d in range(4):
            a('v_permlane32_swap_b32 v%d, v%d'%(64+d,68+d)); a('v_add_f32 v%d, v%d, v%d'%(64+d,64+d,68+d))
        for d in range(4): dpp('v_add_f32',64+d,64+d,64+d,'row_ror:8')
        for d in range(4):
            a('v_mov_b32 v%d, v%d'%(68+d,64+d))
        for d in range(4):
            a('v_permlane16_swap_b32 v%d, v%d'%(64+d,68+d)); a('v_add_f32 v%d, v%d, v%d'%(64+d,64+d,68+d))
        a('v_lshlrev_b32 v60, 8, v3'); a('v_lshl_add_u32 v60, v23, 7, v60'); a('v_lshl_add_u32 v60, v19, 4, v60')
        a('ds_write_b128 v60, v[64:67] offset:%d'%GU)
    W(t_gu+7+depth,gu_comp)
    assert t_gu+7+depth<=t_poll+8
    PL='buffer_load_dword v21, off, s[44:47], 0 sc1'
    def poll1():
        a('s_cmp_lg_u32 s52, 0'); a('s_cbranch_scc1 L_p1'); a(PL); a('L_p1:'); st['p']=cnt[0]
    def poll2():
        a('s_cmp_lg_u32 s52, 0'); a('s_cbranch_scc1 L_p2'); wait(st['p'])
        a('s_mov_b32 s61, 20000'); a('L_p2c:'); a('v_readfirstlane_b32 s5, v21'); a('s_cmp_ge_u32 s5, 256'); a('s_cbranch_scc1 L_p2d')
        a('s_sub_u32 s61, s61, 1'); a('s_cbranch_scc1 L_p2d'); a(PL); a('s_waitcnt vmcnt(0)'); a('s_branch L_p2c')
        a('L_p2d:'); a('s_lshl_b32 s5, s3, 10')
        a('buffer_load_dwordx4 v[8:11], v2, s[48:51], s5 offen sc1'); a('L_p2:'); st['p']=cnt[0]
    def poll3():
        a('s_cmp_lg_u32 s52, 0'); a('s_cbranch_scc1 L_p3'); wait(st['p'])
        a('ds_write_b128 v2, v[8:11] offset:%d'%QB); a('L_p3:')
        lg(); a('s_barrier'); stamp(2)
        a('v_and_b32 v60, 31, v1'); a('v_lshlrev_b32 v60, 4, v60')
        a('ds_read_b128 v[8:11], v60 offset:%d'%QB); a('ds_read_b128 v[12:15], v60 offset:%d'%(QB+512)); lg()
    W(t_poll,poll1); W(t_poll+4,poll2); W(t_poll+8,poll3)
    tq=t_poll+8
    stack=[[],[]]; pool=list(range(64,96))
    def kpair(i):
        def f():
            wait(ms[i+1])
            r=[[pool.pop(0),pool.pop(0)] for h in range(2)]
            for k in range(4):
                for e in range(2):
                    for h in range(2):
                        a('v_dot2_f32_bf16 v%d, v%d, v%d, %s'%(r[h][e],slot(i+e)+k,8+4*h+k,'0' if k==0 else 'v%d'%r[h][e]))
            for h in range(2):
                merge(0,r[h][0],r[h][1],60); pool.append(r[h][1]); stack[h].append((1,r[h][0]))
            while len(stack[0])>1 and stack[0][-1][0]==stack[0][-2][0]:
                for h in range(2):
                    lv,y=stack[h].pop(); _,x=stack[h].pop(); merge(lv,x,y,60+h); pool.append(y); stack[h].append((lv+1,x))
        return f
    t=tq; n=0
    for i in range(0,32,2):
        while i+1>t-dep(t) or n>=kpt: t+=1; n=0
        W(t,kpair(i)); n+=1
        if i<16: assert t<32+i
    tk=t
    def soft():
        r0=stack[0][0][1]; r1=stack[1][0][1]
        a('v_cvt_pk_bf16_f32 v60, v%d, v%d'%(r0,r1)); a('v_lshlrev_b32 v8, 16, v60'); a('v_and_b32 v9, 0xffff0000, v60')
        a('v_mov_b32 v10, v8'); a('v_mov_b32 v11, v9'); a('v_permlane32_swap_b32 v10, v11'); a('v_max_f32 v10, v10, v11'); red32('v_max_f32',10,11)
        a('v_lshlrev_b32 v12, 2, v3'); a('v_lshl_add_u32 v12, v23, 5, v12')
        a('ds_write_b32 v12, v10 offset:%d'%MX); lg(); a('s_barrier')
        a('v_mov_b32 v13, 0')
        for k in range(4): a('ds_read_b128 v[%d:%d], v13 offset:%d'%(64+4*k,67+4*k,MX+16*k))
        lg()
        for h in range(2):
            b=64+8*h; a('v_max3_f32 v%d, v%d, v%d, v%d'%(b,b,b+1,b+2)); a('v_max3_f32 v%d, v%d, v%d, v%d'%(b+3,b+3,b+4,b+5))
            a('v_max3_f32 v%d, v%d, v%d, v%d'%(b,b,b+6,b+7)); a('v_max_f32 v%d, v%d, v%d'%(88+2*h,b,b+3))
        for h in range(2):
            a('v_sub_f32 v%d, v%d, v%d'%(8+h,8+h,88+2*h)); a('v_mul_f32 v%d, s66, v%d'%(8+h,8+h)); a('v_exp_f32 v%d, v%d'%(8+h,8+h))
        a('v_cvt_pk_bf16_f32 v60, v8, v9')
        a('v_lshlrev_b32 v13, 8, v3'); a('v_lshl_add_u32 v13, v23, 7, v13'); a('v_lshl_add_u32 v14, v5, 1, v13')
        a('ds_write_b16 v14, v60 offset:%d'%PP); a('ds_write_b16_d16_hi v14, v60 offset:%d'%(PP+64))
        for k in range(8): a('ds_read_b128 v[%d:%d], v13 offset:%d'%(96+4*k,99+4*k,PP+16*k))
        a('v_permlane32_swap_b32 v8, v9'); a('v_add_f32 v8, v8, v9'); red32('v_add_f32',8,9)
        a('ds_write_b32 v12, v8 offset:%d'%LS); lg(); stamp(3)
    W(tk,soft)
    def vpair(i):
        def f():
            wait(ms[i+1]); j=(i-32)//2; A=slot(i); B=slot(i+1)
            for k in range(4):
                a('v_perm_b32 v%d, v%d, v%d, s64'%(80+2*k,B+k,A+k)); a('v_perm_b32 v%d, v%d, v%d, s65'%(81+2*k,B+k,A+k))
            for d in range(8):
                for h in range(2): a('v_dot2_f32_bf16 v%d, v%d, v%d, %s'%(64+8*h+d,80+d,96+16*h+j,'0' if j==0 else 'v%d'%(64+8*h+d)))
        return f
    for i in range(32,64,2):
        t=i+1
        while t<64 and t-dep(t)<i+1: t+=1
        t=max(tk,t); assert t<i+16 or i+16>63; W(t,vpair(i))
    def mlpub():
        a('s_barrier'); a('s_cmp_lg_u32 s52, 0'); a('s_cbranch_scc1 L_ml'); a('v_mov_b32 v13, 0')
        for k in range(4): a('ds_read_b128 v[%d:%d], v13 offset:%d'%(24+4*k,27+4*k,LS+16*k))
        lg()
        for h in range(2):
            b=24+8*h
            for k in (2,4,6): a('v_pk_add_f32 v[%d:%d], v[%d:%d], v[%d:%d]'%(b,b+1,b,b+1,b+k,b+k+1))
            a('v_add_f32 v%d, v%d, v%d'%(89+2*h,b,b+1))
        a('s_mov_b64 exec, 1'); a('buffer_store_dwordx4 v[88:91], off, s[48:51], s62 offset:2048 sc1'); a('s_mov_b64 exec, -1'); a('L_ml:')
    W(tk+2,mlpub)
    t_wd=max(t_wd,tk+1); t_wo=max(t_wo,tk+1)
    def wd_issue():
        a('v_mul_u32_u24 v40, 3584, v3'); a('v_lshlrev_b32 v41, 4, v1'); a('v_cmp_gt_u32 vcc, 56, v1'); a('v_mov_b32 v42, 0x40000000'); a('v_cndmask_b32 v41, v42, v41, vcc')
        a('v_lshl_add_u32 v43, v40, 1, v41'); a('v_add_u32 v44, 3584, v43'); a('v_add_u32 v41, v40, v41')
        for r in range(4): st['wd']=vm('buffer_load_dwordx4 v[%d:%d], v41, s[32:35], 0 offen offset:%d %s'%(232+4*r,235+4*r,896*r,ont))
    W(t_wd,wd_issue)
    def wd_comp():
        a('v_lshlrev_b32 v45, 8, v19'); a('v_lshl_add_u32 v45, v3, 4, v45')
        a('ds_read_b128 v[24:27], v45 offset:%d'%GU); a('ds_read_b128 v[28:31], v45 offset:%d'%(GU+128)); lg()
        for c in (Q1,Q2,HM):
            for d in range(8): dpp('v_add_f32',24+d,24+d,24+d,c)
        for d in range(8): rb(24+d)
        for d in range(4): a('v_mul_f32 v%d, 0xbfb8aa3b, v%d'%(32+d,24+d))
        for d in range(4): a('v_exp_f32 v%d, v%d'%(32+d,32+d))
        for d in range(4): a('v_add_f32 v%d, 1.0, v%d'%(32+d,32+d))
        for d in range(4): a('v_rcp_f32 v%d, v%d'%(32+d,32+d))
        for d in range(4): a('v_mul_f32 v%d, v%d, v%d'%(24+d,24+d,32+d))
        for d in range(4): rb(24+d)
        for d in range(4): a('v_mul_f32 v%d, v%d, v%d'%(24+d,24+d,28+d))
        a('v_cvt_pk_bf16_f32 v24, v24, v25'); a('v_cvt_pk_bf16_f32 v25, v26, v27')
        wait(st['wd'])
        for p in range(2):
            for k in range(4):
                A=232+8*p+k; a('v_perm_b32 v%d, v%d, v%d, s64'%(28+2*k,A+4,A)); a('v_perm_b32 v%d, v%d, v%d, s65'%(29+2*k,A+4,A))
            for d in range(8): a('v_dot2_f32_bf16 v%d, v%d, v%d, %s'%(48+d,28+d,24+p,'0' if p==0 else 'v%d'%(48+d)))
    W(max(t_wd+dep(t_wd)+1,tk+3),wd_comp)
    def wo_issue(p):
        def f():
            for r in (2*p,2*p+1): st['wo']=vm('buffer_load_dwordx4 v[%d:%d], v%d, s[20:23], 0 offen offset:%d %s'%(200+4*r,203+4*r,43+(r>>2),896*(r&3),ont))
        return f
    def wo_perm():
        wait(st['wo'])
        for p in range(4):
            for k in range(4):
                A=200+8*p+k; a('v_perm_b32 v%d, v%d, v%d, s64'%(192+8*p+2*k,A+4,A)); a('v_perm_b32 v%d, v%d, v%d, s65'%(193+8*p+2*k,A+4,A))
    late = t_wo>=63
    for p in range(4): W(min(63,t_wo+2*p),wo_issue(p))
    if not late: W(min(64,t_wo+7+dep(t_wo+7)),wo_perm)
    ML='buffer_load_dwordx2 v[24:25], v26, s[48:51], s67 offen offset:2048 sc1'
    def ml1():
        a('s_lshl_b32 s67, s3, 15'); a('s_add_u32 s67, s67, %d'%REC1); a('s_lshr_b32 s5, s4, 2'); a('s_lshl_b32 s5, s5, 3')
        a('v_lshl_add_u32 v26, v19, 12, s5'); st['ml']=vm(ML)
        a('s_lshl_b32 s5, s4, 8'); a('v_lshlrev_b32 v27, 12, v19'); a('v_lshl_add_u32 v27, v16, 2, v27'); a('v_lshl_add_u32 v27, v3, 5, v27'); a('v_add_u32 v27, s5, v27')
        a('v_mul_u32_u24 v28, %d, v3'%WS); a('v_lshl_add_u32 v28, v1, 4, v28')
        a('v_and_b32 v29, 3, v1'); a('v_mul_u32_u24 v29, %d, v29'%(2*WS)); a('v_bfe_u32 v30, v1, 2, 1'); a('v_mul_u32_u24 v30, %d, v30'%DH); a('v_add_u32 v29, v29, v30')
        a('v_lshl_add_u32 v29, v16, 4, v29'); a('v_lshl_add_u32 v29, v3, 7, v29')
        a('v_lshlrev_b32 v30, 2, v0')
        a('s_lshl_b32 s68, s53, 17'); a('s_add_u32 s68, s68, %d'%REC2); a('s_lshl_b32 s5, s55, 7'); a('s_add_u32 s68, s68, s5')
        a('v_lshlrev_b32 v31, 11, v19'); a('v_lshl_add_u32 v31, v16, 4, v31')
        a('s_mul_i32 s5, s53, 896'); a('s_lshl_b32 s7, s55, 6'); a('s_add_u32 s5, s5, s7'); a('v_lshl_add_u32 v32, v16, 3, s5')
        for k in range(1,8): a('s_add_u32 s%d, s68, %d'%(68+k,16384*k))
        vm('buffer_load_dwordx2 v[34:35], v32, s[36:39], 0 offen')
    def ml2():
        wait(st['ml']); spin('L_mls',[ML],[24,25])
        a('v_mov_b32 v36, v24')
        for c in (Q1,Q2,HM): dpp('v_max_f32',36,36,36,c)
        a('v_sub_f32 v24, v24, v36'); a('v_mul_f32 v24, s66, v24'); a('v_exp_f32 v24, v24'); a('v_mul_f32 v25, v24, v25')
        for c in (Q1,Q2,HM): dpp('v_add_f32',25,25,25,c)
        a('v_rcp_f32 v25, v25'); a('v_mul_f32 v33, v24, v25')
    W(t_ml,ml1); W(min(63,t_ml+dep(t_ml)+1),ml2)
    for t in range(t0,65):
        if t<64:
            if t-dep(t)>=0: wait(ms[t-dep(t)])
            issue(t)
        for f in work[t]: f()
    for t in range(65,70): assert not work[t]
    stamp(4)
    def xred(base,src,soff,lab):
        a('ds_write_b128 v28, v[%d:%d] offset:%d'%(src,src+3,base)); a('ds_write_b128 v28, v[%d:%d] offset:%d'%(src+4,src+7,base+DH))
        lg(); a('s_barrier')
        if lab: a('s_cmp_eq_u32 s52, 7'); a('s_cbranch_scc1 '+lab)
        a('ds_read_b128 v[80:83], v29 offset:%d'%base); a('ds_read_b128 v[84:87], v29 offset:%d'%(base+WS)); lg()
        a('v_pk_add_f32 v[80:81], v[80:81], v[84:85]'); a('v_pk_add_f32 v[82:83], v[82:83], v[86:87]')
        for c in (Q1,Q2):
            for d in range(4): dpp('v_add_f32',80+d,80+d,80+d,c)
        a('s_mov_b32 exec_lo, 0x11111111'); a('s_mov_b32 exec_hi, 0x11111111')
        a('buffer_store_dwordx4 v[80:83], v30, s[48:51], %s offen sc1'%soff)
    for d in range(8): a('v_permlane32_swap_b32 v%d, v%d'%(64+d,72+d))
    for d in range(0,8,2): a('v_pk_add_f32 v[%d:%d], v[%d:%d], v[%d:%d]'%(64+d,65+d,64+d,65+d,72+d,73+d))
    xred(OR,64,'s62',None)
    a('s_mov_b64 exec, -1')
    OL='buffer_load_dword v24, v27, s[48:51], s67 offen sc1'
    a(OL)
    if late: cnt[0]+=2; wo_perm()
    a('s_waitcnt vmcnt(0)'); spin('L_os',[OL],[24])
    stamp(5)
    a('v_mul_f32 v24, v24, v33')
    for c in (Q1,Q2,HM): dpp('v_add_f32',24,24,24,c)
    a('v_mov_b32_dpp v25, v24 row_ror:8 row_mask:0xf bank_mask:0xf'); a('v_cvt_pk_bf16_f32 v24, v24, v25')
    for p in range(4): a('v_readlane_b32 s%d, v24, %d'%(76+p,16*p))
    for p in range(4):
        for d in range(8): a('v_dot2_f32_bf16 v%d, v%d, s%d, v%d'%(48+d,192+8*p+d,76+p,48+d))
    xred(OP,48,'s63','L_fin')
    a('s_branch L_done')
    a('L_fin:')
    a('s_cmp_ge_u32 s55, 14'); a('s_cbranch_scc1 L_done')
    FL=['buffer_load_dwordx4 v[%d:%d], v31, s[48:51], s%d offen sc1'%(96+4*k,99+4*k,68+k) for k in range(8)]
    for l in FL: a(l)
    a('s_waitcnt vmcnt(0)'); spin('L_fs',FL,list(range(96,128)))
    for s in (16,8,4):
        for k in range(0,s,2): a('v_pk_add_f32 v[%d:%d], v[%d:%d], v[%d:%d]'%(96+k,97+k,96+k,97+k,96+s+k,97+s+k))
    a('v_lshlrev_b32 v36, 16, v34'); a('v_and_b32 v37, 0xffff0000, v34'); a('v_lshlrev_b32 v38, 16, v35'); a('v_and_b32 v39, 0xffff0000, v35')
    for c in (Q1,Q2,HM):
        for d in range(4): dpp('v_add_f32',96+d,96+d,96+d,c)
    a('v_pk_add_f32 v[96:97], v[96:97], v[36:37]'); a('v_pk_add_f32 v[98:99], v[98:99], v[38:39]')
    a('v_cvt_pk_bf16_f32 v96, v96, v97'); a('v_cvt_pk_bf16_f32 v97, v98, v99')
    a('s_mov_b32 exec_lo, 0x01010101'); a('s_mov_b32 exec_hi, 0x01010101')
    a('buffer_store_dwordx2 v[96:97], v32, s[40:43], 0 offen')
    a('L_done:')
    if stamps:
        stamp(6); a('s_getreg_b32 s97, hwreg(HW_REG_XCC_ID)'); srd(8,86,'0x20000000',1<<20)
        a('s_lshl_b32 s5, s2, 3'); a('s_add_u32 s5, s5, s52'); a('s_lshl_b32 s5, s5, 5'); a('s_mov_b64 exec, 1')
        for k in range(8): a('v_mov_b32 v%d, s%d'%(8+k,90+k))
        a('buffer_store_dwordx4 v[8:11], off, s[8:11], s5'); a('buffer_store_dwordx4 v[12:15], off, s[8:11], s5 offset:16')
    if hold:
        a('L_hold:'); a('s_memrealtime s[88:89]'); lg(); a('s_sub_u32 s5, s88, s90'); a('s_cmp_lt_u32 s5, %d'%hold); a('s_cbranch_scc1 L_hold')
    if stamps==2:
        a('s_cmp_lg_u32 s52, 7'); a('s_cbranch_scc1 L_end'); a('s_not_b32 s97, s90'); a('s_mov_b64 exec, 0xff')
        for k in range(8): a('v_writelane_b32 v20, s%d, %d'%(90+k,k))
        a('v_lshlrev_b32 v21, 2, v1'); a('buffer_atomic_umax v20, v21, s[44:47], 0 offen offset:32 sc1')
    a('L_end:')
    ref=open('parallel_sum__sliding_block_cached__swiglu_ffn__decode.s.ref').read().split('\n')
    i0=[i for i,l in enumerate(ref) if l.startswith(KN+':')][0]; i1=[i for i,l in enumerate(ref) if l.startswith('s_endpgm')][0]
    hdr=['; @launch grid=(256,1,1) block=(512,1,1) lds=%d'%LDS if l.startswith('; @launch') else l for l in ref[:i0+1]]
    body=[l if l.endswith(':') else '    '+l for l in pad(L)]
    return '\n'.join(hdr+body+ref[i1:])
if __name__=='__main__':
    from asm import build
    name=sys.argv[1]; kw=eval('dict(%s)'%(sys.argv[2] if len(sys.argv)>2 else ''))
    open(name+'.s','w').write(gen(**kw)); build(name+'.s',name+'.co'); print('ok',LDS)
```

```python
import sys
sys.path.insert(0,'exp'); sys.path.insert(0,'k')
from hz import pad
KN="parallel_sum__sliding_block_cached__swiglu_ffn__decode_kernel"
XN=0; QP=4096; QB=6144; GU=7168; MX=9216; LS=9280; PP=9472; OR=12288; WS=2320; DH=1152; OP=OR+8*WS; LDS=OP+8*WS
REC1=0x10000; REC2=0x200000
def gen(depth=4, burst=4, nt='nt', wnt='nt', stamps=False, t_gu=8, t_poll=21, t_wd=34, t_wo=40, t_ml=52, pf=1, gap=1000, gmin=0, hold=0, d1=4, t_up=40, slope=1, kpt=3, ont='nt', drop='', bar0=1, pro=0, xnt='', qnt='nt', t_ar=2):
    L=[]; auto=[0]; acc=[0]; nxt=[burst]
    def a(x):
        L.append(x)
        if auto[0] and x.startswith('v_'):
            acc[0]+=1
            if acc[0]>=auto[0]: acc[0]=0; issue(nxt[0]); nxt[0]+=1
    cnt=[0]
    def vm(s): a(s); cnt[0]+=1; return cnt[0]
    def wait(m): a('s_waitcnt vmcnt(%d)'%min(63,cnt[0]-m))
    def lg(): a('s_waitcnt lgkmcnt(0)')
    def stamp(k,p=0):
        if stamps and (p==pro or k in (1,6)): a('s_memrealtime s[88:89]'); lg(); a('s_mov_b32 s%d, s88'%(90+k))
    def srd(d,b,off,n):
        if off is None: a('s_mov_b32 s%d, s%d'%(d,b)); a('s_mov_b32 s%d, s%d'%(d+1,b+1))
        else: a('s_add_u32 s%d, s%d, %s'%(d,b,off)); a('s_addc_u32 s%d, s%d, 0'%(d+1,b+1))
        a('s_mov_b32 s%d, %s'%(d+2,n)); a('s_mov_b32 s%d, 0x20000'%(d+3))
    def rb(v): a('v_cvt_pk_bf16_f32 v%d, v%d, v%d'%(v,v,v)); a('v_and_b32 v%d, 0xffff0000, v%d'%(v,v))
    def dpp(op,d,s0,s1,ctl,bank=0xf): a('%s_dpp v%d, v%d, v%d %s row_mask:0xf bank_mask:0x%x'%(op,d,s0,s1,ctl,bank))
    Q1='quad_perm:[1,0,3,2]'; Q2='quad_perm:[2,3,0,1]'; HM='row_half_mirror'
    def merge(lv,x,y,t):
        if lv==0: a('v_permlane16_swap_b32 v%d, v%d'%(x,y)); a('v_add_f32 v%d, v%d, v%d'%(x,x,y))
        elif lv==1: dpp('v_add_f32',x,x,x,'row_ror:8',0x3); dpp('v_add_f32',x,y,y,'row_ror:8',0xc)
        elif lv==2: dpp('v_add_f32',x,x,x,HM,0x5); dpp('v_add_f32',x,y,y,HM,0xa)
        else:
            m='s[56:57]' if lv==3 else 's[58:59]'
            a('v_cndmask_b32 v%d, v%d, v%d, %s'%(t,y,x,m)); a('v_cndmask_b32 v%d, v%d, v%d, %s'%(x,x,y,m))
            dpp('v_add_f32',x,t,x,Q2 if lv==3 else Q1)
    def red32(op,x,t):
        for c in ('row_ror:8','row_ror:4','row_ror:2','row_ror:1'): dpp(op,x,x,x,c)
        a('v_mov_b32 v%d, v%d'%(t,x)); a('v_permlane16_swap_b32 v%d, v%d'%(x,t)); a('%s v%d, v%d, v%d'%(op,x,x,t))
    def spin(name,load,rs):
        a('s_mov_b32 s61, 20000')
        a(name+'_c:')
        chk(rs); a('s_cbranch_vccz %s_d'%name)
        a('s_sub_u32 s61, s61, 1'); a('s_cbranch_scc1 %s_d'%name)
        for l in load: a(l)
        a('s_waitcnt vmcnt(0)'); a('s_branch %s_c'%name)
        a(name+'_d:')
    def chk(rs):
        if len(rs)==1: a('v_cmp_eq_u32 vcc, -1, v%d'%rs[0]); return
        a('v_max_u32 v7, v%d, v%d'%(rs[0],rs[1]))
        for k in range(2,len(rs),2): a('v_max3_u32 v7, v7, v%d, v%d'%(rs[k],rs[k+1]))
        a('v_cmp_eq_u32 vcc, -1, v7')
    a('s_cmp_ge_u32 s2, 256'); a('s_cbranch_scc1 L_end')
    a('s_load_dwordx16 s[64:79], s[0:1], 0'); a('s_load_dwordx8 s[80:87], s[0:1], 64')
    if stamps: a('s_memrealtime s[88:89]')
    if pf:
        a('s_getpc_b64 s[4:5]'); a('v_lshlrev_b32 v46, 6, v0'); a('v_min_u32 v46, L_end-%s-64, v46'%KN); vm('global_load_dword v47, v46, s[4:5]')
    a('v_and_b32 v1, 63, v0'); a('v_lshrrev_b32 v3, 6, v0'); a('v_readfirstlane_b32 s52, v3'); a('v_lshlrev_b32 v2, 4, v0')
    a('s_lshr_b32 s3, s2, 3'); a('s_and_b32 s4, s2, 7')
    a('s_lshl_b32 s5, s3, 23'); a('s_lshl_b32 s6, s4, 18'); a('s_add_u32 s5, s5, s6'); a('s_add_u32 s5, s5, %d'%(12288*512))
    a('s_lshl_b32 s6, s4, 5'); a('s_add_u32 s6, s6, s3'); a('s_lshl_b32 s6, s6, 5')
    a('s_sub_u32 s7, %d, s6'%(448*8192))
    a('s_lshr_b32 s53, s2, 6')
    a('v_mul_u32_u24 v4, 896, v3'); a('v_lshl_add_u32 v4, v1, 4, v4')
    a('v_and_b32 v5, 31, v1'); a('v_lshl_add_u32 v6, v3, 6, v5')
    a('v_lshlrev_b32 v22, 13, v6'); a('v_lshrrev_b32 v23, 5, v1'); a('v_lshl_add_u32 v22, v23, 4, v22')
    a('s_mov_b32 s54, 0x40000'); a('s_mov_b32 s60, 0')
    lg()
    if stamps: a('s_mov_b32 s90, s88')
    srd(36,64,None,3584); srd(16,70,'s6',0 if 'q' in drop else 's7'); srd(8,66,'s5',1<<18); srd(48,86,None,0x400000)
    mx=vm('buffer_load_dwordx4 v[96:99], v4, s[36:39], 0 offen '+xnt)
    vm('buffer_load_dwordx4 v[52:55], v22, s[16:19], 0 offen '+qnt)
    mq=vm('buffer_load_dwordx4 v[56:59], v22, s[16:19], s54 offen '+qnt)
    a('s_lshl_b32 s62, s2, 12'); a('s_add_u32 s62, s62, %d'%REC1)
    a('s_lshl_b32 s63, s2, 11'); a('s_add_u32 s63, s63, %d'%REC2)
    a('s_cmp_lg_u32 s52, 7'); a('s_cbranch_scc1 L_noclr')
    for k in range(4): a('v_mov_b32 v%d, -1'%(60+k))
    a('v_lshlrev_b32 v64, 4, v1')
    for o in (0,1024,2048): a('buffer_store_dwordx4 v[60:63], v64, s[48:51], s62 offen offset:%d sc1'%o)
    for o in (0,1024): a('buffer_store_dwordx4 v[60:63], v64, s[48:51], s63 offen offset:%d sc1'%o)
    a('L_noclr:')
    mclr=cnt[0]
    ms={}
    def slot(t): return 128+4*(t if t<32 else (t-32)%16)
    def issue(t):
        if t==32: a('s_mov_b32 s60, 0')
        ms[t]=vm('buffer_load_dwordx4 v[%d:%d], v2, s[%d:%d], s60 offen %s'%(slot(t),slot(t)+3,8 if t<32 else 12,11 if t<32 else 15,nt))
        a('s_add_u32 s60, s60, 0x2000')
    if bar0: a('s_barrier')
    for t in range(burst): issue(t)
    srd(12,68,'s5',1<<18); srd(44,84,None,256); srd(40,82,None,3584)
    a('s_and_b32 s5, s3, 7'); a('s_lshl_b32 s55, s4, 3'); a('s_add_u32 s55, s55, s5')
    a('s_mul_i32 s5, s55, 56'); srd(24,76,'s5',0 if 'g' in drop else 448*3584); srd(28,78,'s5',0 if 'g' in drop else 448*3584)
    a('s_mul_i32 s5, s55, %d'%(28*896)); srd(32,80,'s5',0 if 'o' in drop else 28*896)
    a('s_and_b32 s55, s2, 63'); a('s_mul_i32 s5, s55, %d'%(64*896)); srd(20,72,'s5',0 if 'o' in drop else 64*896)
    a('s_mov_b32 s56, 0xcccccccc'); a('s_mov_b32 s57, s56'); a('s_mov_b32 s58, 0xaaaaaaaa'); a('s_mov_b32 s59, s58')
    a('s_mov_b32 s64, 0x05040100'); a('s_mov_b32 s65, 0x07060302'); a('s_mov_b32 s66, 0x3db8aa3b')
    a('v_lshlrev_b32 v6, 1, v6')
    a('v_lshrrev_b32 v16, 3, v1'); a('v_mul_u32_u24 v17, 56, v3'); a('v_add_u32 v17, v17, v16')
    a('s_mul_i32 s5, s53, 896'); a('v_lshl_add_u32 v18, v17, 1, s5')
    a('v_mul_u32_u24 v17, 3584, v17'); a('v_and_b32 v19, 7, v1'); a('v_min_u32 v20, 6, v19'); a('v_lshl_add_u32 v17, v20, 3, v17')
    a('v_bfrev_b32 v5, v5'); a('v_lshrrev_b32 v5, 27, v5')
    stamp(2,1)
    a('s_cmp_ge_u32 s52, 4'); a('s_cbranch_scc1 L_noln')
    def red64(x,t):
        a('v_mov_b32 v%d, v%d'%(t,x)); a('v_permlane32_swap_b32 v%d, v%d'%(x,t)); a('v_add_f32 v%d, v%d, v%d'%(x,x,t)); red32('v_add_f32',x,t)
    a('v_mov_b32 v60, 0'); a('v_mov_b32 v62, 0'); a('s_mov_b32 exec_hi, 0x00ffffff')
    wait(mx)
    for k in range(4):
        a('v_lshlrev_b32 v%d, 16, v%d'%(24+2*k,96+k)); a('v_and_b32 v%d, 0xffff0000, v%d'%(25+2*k,96+k))
    a('v_pk_add_f32 v[32:33], v[24:25], v[26:27]'); a('v_pk_add_f32 v[34:35], v[28:29], v[30:31]'); a('v_pk_add_f32 v[32:33], v[32:33], v[34:35]')
    a('v_add_f32 v60, v32, v33'); a('s_mov_b32 exec_hi, -1'); red64(60,61)
    a('v_mul_f32 v60, 0xbb124925, v60'); a('v_mov_b32 v61, v60'); a('s_mov_b32 exec_hi, 0x00ffffff')
    for k in range(4): a('v_pk_add_f32 v[%d:%d], v[%d:%d], v[60:61]'%(32+2*k,33+2*k,24+2*k,25+2*k))
    a('v_pk_mul_f32 v[32:33], v[32:33], v[32:33]'); a('v_pk_mul_f32 v[34:35], v[34:35], v[34:35]')
    a('v_pk_fma_f32 v[32:33], v[36:37], v[36:37], v[32:33]'); a('v_pk_fma_f32 v[34:35], v[38:39], v[38:39], v[34:35]'); a('v_pk_add_f32 v[32:33], v[32:33], v[34:35]')
    a('v_add_f32 v62, v32, v33'); a('s_mov_b32 exec_hi, -1'); red64(62,63)
    a('v_mul_f32 v62, 0x3b124925, v62'); rb(62); rb(60)
    a('v_add_f32 v62, 0x3727c5ac, v62'); rb(62); a('v_sqrt_f32 v62, v62'); rb(62); a('v_rcp_f32 v63, v62')
    for k in range(8): a('v_add_f32 v%d, v60, v%d'%(24+k,24+k))
    for k in range(4): a('v_cvt_pk_bf16_f32 v%d, v%d, v%d'%(96+k,24+2*k,25+2*k))
    for k in range(4):
        a('v_lshlrev_b32 v%d, 16, v%d'%(24+2*k,96+k)); a('v_and_b32 v%d, 0xffff0000, v%d'%(25+2*k,96+k))
    for k in range(8): a('v_mul_f32 v%d, v63, v%d'%(32+k,24+k))
    for k in range(8): a('v_fma_f32 v%d, -v%d, v62, v%d'%(24+k,32+k,24+k))
    for k in range(8): a('v_fmac_f32 v%d, v%d, v63'%(32+k,24+k))
    for k in range(4): a('v_cvt_pk_bf16_f32 v%d, v%d, v%d'%(96+k,32+2*k,33+2*k))
    a('s_mov_b32 exec_hi, 0x00ffffff'); a('ds_write_b128 v4, v[96:99] offset:%d'%XN); a('s_mov_b32 exec_hi, -1'); lg()
    a('L_noln:'); a('s_barrier'); stamp(3,1)
    auto[0]=gap
    for b in range(4):
        a('ds_read_u16 v%d, v6 offset:%d'%(104+b,XN+896*b)); a('ds_read_u16 v%d, v6 offset:%d'%(108+b,XN+896*b+64))
    for k in range(7): a('ds_read_u16 v%d, v18 offset:%d'%(112+k,XN+16*k))
    stamp(4,1); wait(mq); stamp(5,1)
    for k in range(4):
        a('v_perm_b32 v%d, v%d, v%d, s64'%(96+2*k,56+k,52+k)); a('v_perm_b32 v%d, v%d, v%d, s65'%(97+2*k,56+k,52+k))
    lg()
    for b in range(4): a('v_lshl_or_b32 v%d, v%d, 16, v%d'%(104+b,108+b,104+b))
    for b in range(4):
        for c in range(8): a('v_dot2_f32_bf16 v%d, v%d, v%d, 0'%(64+8*b+c,96+c,104+b))
    for lv in range(5):
        for i in range(0,32,2<<lv): merge(lv,64+i,64+i+(1<<lv),96+(i>>lv+1))
    a('v_lshrrev_b32 v21, 3, v5'); a('v_lshlrev_b32 v21, 6, v21'); a('v_and_b32 v22, 7, v5'); a('v_lshl_add_u32 v21, v22, 2, v21')
    a('v_lshl_add_u32 v21, v23, 5, v21'); a('v_lshl_add_u32 v21, v3, 8, v21')
    a('ds_write_b32 v21, v64 offset:%d'%QP)
    auto[0]=0; wait(mclr); lg(); a('s_barrier')
    a('s_cmp_lg_u32 s52, 0'); a('s_cbranch_scc1 L_noq')
    a('v_lshlrev_b32 v21, 3, v1'); a('s_mov_b32 exec_hi, 0')
    for k in range(7): a('ds_read_b64 v[%d:%d], v21 offset:%d'%(64+2*k,65+2*k,QP+256*k))
    a('v_lshlrev_b32 v22, 13, v16'); a('v_lshl_add_u32 v22, v19, 2, v22')
    lg()
    for k in range(1,7): a('v_pk_add_f32 v[64:65], v[64:65], v[%d:%d]'%(64+2*k,65+2*k))
    a('v_cvt_pk_bf16_f32 v64, v64, v65')
    a('buffer_store_dword v64, v22, s[48:51], s6 offen sc1')
    a('s_mov_b64 exec, -1')
    a('L_noq:'); mst=cnt[0]; t0=nxt[0]; print('t0',t0)
    stamp(1)
    work={t:[] for t in range(burst,70)}
    st={}
    def W(t,f): work[t].append(f)
    def dep(t): return min(d1,depth+max(0,(t-t_up)//slope))
    def arrive():
        a('s_cmp_lg_u32 s52, 0'); a('s_cbranch_scc1 L_ar'); a('s_mov_b32 s79, 1')
        if gmin: a('s_not_b32 s5, s90'); a('v_mov_b32 v20, s5'); a('s_mov_b64 exec, 1'); a('buffer_atomic_umax v20, off, s[44:47], 0 offset:128 sc1'); a('s_mov_b64 exec, -1'); a('s_waitcnt vmcnt(0)')
        wait(mst); a('s_atomic_add s79, s[84:85], 0'); a('L_ar:')
    W(t0+t_ar,arrive)
    t_gu=max(t_gu,t0)
    def gu_issue(k):
        def f():
            a('s_mov_b32 s5, %d'%(28672*k))
            vm('buffer_load_dwordx2 v[%d:%d], v17, s[24:27], s5 offen %s'%(24+2*k,25+2*k,wnt))
            st['gu']=vm('buffer_load_dwordx2 v[%d:%d], v17, s[28:31], s5 offen %s'%(38+2*k,39+2*k,wnt))
        return f
    for k in range(7): W(t_gu+k,gu_issue(k))
    def gu_comp():
        for k in range(7): a('v_lshlrev_b32 v%d, 16, v%d'%(112+k,112+k))
        wait(st['gu'])
        for m in range(2):
            for k in range(7):
                for j in range(2):
                    r=24+14*m+2*k+j
                    a('v_lshlrev_b32 v60, 16, v%d'%r); a('v_and_b32 v61, 0xffff0000, v%d'%r)
                    for e in range(2):
                        d=64+4*m+2*j+e
                        a(('v_mul_f32' if k==0 else 'v_fmac_f32')+' v%d, v%d, v%d'%(d,60+e,112+k))
        for d in range(4):
            a('v_permlane32_swap_b32 v%d, v%d'%(64+d,68+d)); a('v_add_f32 v%d, v%d, v%d'%(64+d,64+d,68+d))
        for d in range(4): dpp('v_add_f32',64+d,64+d,64+d,'row_ror:8')
        for d in range(4):
            a('v_mov_b32 v%d, v%d'%(68+d,64+d))
        for d in range(4):
            a('v_permlane16_swap_b32 v%d, v%d'%(64+d,68+d)); a('v_add_f32 v%d, v%d, v%d'%(64+d,64+d,68+d))
        a('v_lshlrev_b32 v60, 8, v3'); a('v_lshl_add_u32 v60, v23, 7, v60'); a('v_lshl_add_u32 v60, v19, 4, v60')
        a('ds_write_b128 v60, v[64:67] offset:%d'%GU)
    W(t_gu+7+depth,gu_comp)
    assert t_gu+7+depth<=t_poll+8
    PL='buffer_load_dword v21, off, s[44:47], 0 sc1'
    def poll1():
        a('s_cmp_lg_u32 s52, 0'); a('s_cbranch_scc1 L_p1'); a(PL); a('L_p1:'); st['p']=cnt[0]
    def poll2():
        a('s_cmp_lg_u32 s52, 0'); a('s_cbranch_scc1 L_p2'); wait(st['p'])
        a('s_mov_b32 s61, 20000'); a('L_p2c:'); a('v_readfirstlane_b32 s5, v21'); a('s_cmp_ge_u32 s5, 256'); a('s_cbranch_scc1 L_p2d')
        a('s_sub_u32 s61, s61, 1'); a('s_cbranch_scc1 L_p2d'); a(PL); a('s_waitcnt vmcnt(0)'); a('s_branch L_p2c')
        a('L_p2d:'); a('s_lshl_b32 s5, s3, 10')
        a('buffer_load_dwordx4 v[8:11], v2, s[48:51], s5 offen sc1'); a('L_p2:'); st['p']=cnt[0]
    def poll3():
        a('s_cmp_lg_u32 s52, 0'); a('s_cbranch_scc1 L_p3'); wait(st['p'])
        a('ds_write_b128 v2, v[8:11] offset:%d'%QB); a('L_p3:')
        lg(); a('s_barrier'); stamp(2)
        a('v_and_b32 v60, 31, v1'); a('v_lshlrev_b32 v60, 4, v60')
        a('ds_read_b128 v[8:11], v60 offset:%d'%QB); a('ds_read_b128 v[12:15], v60 offset:%d'%(QB+512)); lg()
    W(t_poll,poll1); W(t_poll+4,poll2); W(t_poll+8,poll3)
    tq=t_poll+8
    stack=[[],[]]; pool=list(range(64,96))
    def kpair(i):
        def f():
            wait(ms[i+1])
            r=[[pool.pop(0),pool.pop(0)] for h in range(2)]
            for k in range(4):
                for e in range(2):
                    for h in range(2):
                        a('v_dot2_f32_bf16 v%d, v%d, v%d, %s'%(r[h][e],slot(i+e)+k,8+4*h+k,'0' if k==0 else 'v%d'%r[h][e]))
            for h in range(2):
                merge(0,r[h][0],r[h][1],60); pool.append(r[h][1]); stack[h].append((1,r[h][0]))
            while len(stack[0])>1 and stack[0][-1][0]==stack[0][-2][0]:
                for h in range(2):
                    lv,y=stack[h].pop(); _,x=stack[h].pop(); merge(lv,x,y,60+h); pool.append(y); stack[h].append((lv+1,x))
        return f
    t=tq; n=0
    for i in range(0,32,2):
        while i+1>t-dep(t) or n>=kpt: t+=1; n=0
        W(t,kpair(i)); n+=1
        if i<16: assert t<32+i
    tk=t
    def soft():
        r0=stack[0][0][1]; r1=stack[1][0][1]
        a('v_cvt_pk_bf16_f32 v60, v%d, v%d'%(r0,r1)); a('v_lshlrev_b32 v8, 16, v60'); a('v_and_b32 v9, 0xffff0000, v60')
        a('v_mov_b32 v10, v8'); a('v_mov_b32 v11, v9'); a('v_permlane32_swap_b32 v10, v11'); a('v_max_f32 v10, v10, v11'); red32('v_max_f32',10,11)
        a('v_lshlrev_b32 v12, 2, v3'); a('v_lshl_add_u32 v12, v23, 5, v12')
        a('ds_write_b32 v12, v10 offset:%d'%MX); lg(); a('s_barrier')
        a('v_mov_b32 v13, 0')
        for k in range(4): a('ds_read_b128 v[%d:%d], v13 offset:%d'%(64+4*k,67+4*k,MX+16*k))
        lg()
        for h in range(2):
            b=64+8*h; a('v_max3_f32 v%d, v%d, v%d, v%d'%(b,b,b+1,b+2)); a('v_max3_f32 v%d, v%d, v%d, v%d'%(b+3,b+3,b+4,b+5))
            a('v_max3_f32 v%d, v%d, v%d, v%d'%(b,b,b+6,b+7)); a('v_max_f32 v%d, v%d, v%d'%(88+2*h,b,b+3))
        for h in range(2):
            a('v_sub_f32 v%d, v%d, v%d'%(8+h,8+h,88+2*h)); a('v_mul_f32 v%d, s66, v%d'%(8+h,8+h)); a('v_exp_f32 v%d, v%d'%(8+h,8+h))
        a('v_cvt_pk_bf16_f32 v60, v8, v9')
        a('v_lshlrev_b32 v13, 8, v3'); a('v_lshl_add_u32 v13, v23, 7, v13'); a('v_lshl_add_u32 v14, v5, 1, v13')
        a('ds_write_b16 v14, v60 offset:%d'%PP); a('ds_write_b16_d16_hi v14, v60 offset:%d'%(PP+64))
        for k in range(8): a('ds_read_b128 v[%d:%d], v13 offset:%d'%(96+4*k,99+4*k,PP+16*k))
        a('v_permlane32_swap_b32 v8, v9'); a('v_add_f32 v8, v8, v9'); red32('v_add_f32',8,9)
        a('ds_write_b32 v12, v8 offset:%d'%LS); lg(); stamp(3)
    W(tk,soft)
    def vpair(i):
        def f():
            wait(ms[i+1]); j=(i-32)//2; A=slot(i); B=slot(i+1)
            for k in range(4):
                a('v_perm_b32 v%d, v%d, v%d, s64'%(80+2*k,B+k,A+k)); a('v_perm_b32 v%d, v%d, v%d, s65'%(81+2*k,B+k,A+k))
            for d in range(8):
                for h in range(2): a('v_dot2_f32_bf16 v%d, v%d, v%d, %s'%(64+8*h+d,80+d,96+16*h+j,'0' if j==0 else 'v%d'%(64+8*h+d)))
        return f
    for i in range(32,64,2):
        t=i+1
        while t<64 and t-dep(t)<i+1: t+=1
        t=max(tk,t); assert t<i+16 or i+16>63; W(t,vpair(i))
    def mlpub():
        a('s_barrier'); a('s_cmp_lg_u32 s52, 0'); a('s_cbranch_scc1 L_ml'); a('v_mov_b32 v13, 0')
        for k in range(4): a('ds_read_b128 v[%d:%d], v13 offset:%d'%(24+4*k,27+4*k,LS+16*k))
        lg()
        for h in range(2):
            b=24+8*h
            for k in (2,4,6): a('v_pk_add_f32 v[%d:%d], v[%d:%d], v[%d:%d]'%(b,b+1,b,b+1,b+k,b+k+1))
            a('v_add_f32 v%d, v%d, v%d'%(89+2*h,b,b+1))
        a('s_mov_b64 exec, 1'); a('buffer_store_dwordx4 v[88:91], off, s[48:51], s62 offset:2048 sc1'); a('s_mov_b64 exec, -1'); a('L_ml:')
    W(tk+2,mlpub)
    t_wd=max(t_wd,tk+1); t_wo=max(t_wo,tk+1)
    def wd_issue():
        a('v_mul_u32_u24 v40, 3584, v3'); a('v_lshlrev_b32 v41, 4, v1'); a('v_cmp_gt_u32 vcc, 56, v1'); a('v_mov_b32 v42, 0x40000000'); a('v_cndmask_b32 v41, v42, v41, vcc')
        a('v_lshl_add_u32 v43, v40, 1, v41'); a('v_add_u32 v44, 3584, v43'); a('v_add_u32 v41, v40, v41')
        for r in range(4): st['wd']=vm('buffer_load_dwordx4 v[%d:%d], v41, s[32:35], 0 offen offset:%d %s'%(232+4*r,235+4*r,896*r,ont))
    W(t_wd,wd_issue)
    def wd_comp():
        a('v_lshlrev_b32 v45, 8, v19'); a('v_lshl_add_u32 v45, v3, 4, v45')
        a('ds_read_b128 v[24:27], v45 offset:%d'%GU); a('ds_read_b128 v[28:31], v45 offset:%d'%(GU+128)); lg()
        for c in (Q1,Q2,HM):
            for d in range(8): dpp('v_add_f32',24+d,24+d,24+d,c)
        for d in range(8): rb(24+d)
        for d in range(4): a('v_mul_f32 v%d, 0xbfb8aa3b, v%d'%(32+d,24+d))
        for d in range(4): a('v_exp_f32 v%d, v%d'%(32+d,32+d))
        for d in range(4): a('v_add_f32 v%d, 1.0, v%d'%(32+d,32+d))
        for d in range(4): a('v_rcp_f32 v%d, v%d'%(32+d,32+d))
        for d in range(4): a('v_mul_f32 v%d, v%d, v%d'%(24+d,24+d,32+d))
        for d in range(4): rb(24+d)
        for d in range(4): a('v_mul_f32 v%d, v%d, v%d'%(24+d,24+d,28+d))
        a('v_cvt_pk_bf16_f32 v24, v24, v25'); a('v_cvt_pk_bf16_f32 v25, v26, v27')
        wait(st['wd'])
        for p in range(2):
            for k in range(4):
                A=232+8*p+k; a('v_perm_b32 v%d, v%d, v%d, s64'%(28+2*k,A+4,A)); a('v_perm_b32 v%d, v%d, v%d, s65'%(29+2*k,A+4,A))
            for d in range(8): a('v_dot2_f32_bf16 v%d, v%d, v%d, %s'%(48+d,28+d,24+p,'0' if p==0 else 'v%d'%(48+d)))
    W(max(t_wd+dep(t_wd)+1,tk+3),wd_comp)
    def wo_issue(p):
        def f():
            for r in (2*p,2*p+1): st['wo']=vm('buffer_load_dwordx4 v[%d:%d], v%d, s[20:23], 0 offen offset:%d %s'%(200+4*r,203+4*r,43+(r>>2),896*(r&3),ont))
        return f
    def wo_perm():
        wait(st['wo'])
        for p in range(4):
            for k in range(4):
                A=200+8*p+k; a('v_perm_b32 v%d, v%d, v%d, s64'%(192+8*p+2*k,A+4,A)); a('v_perm_b32 v%d, v%d, v%d, s65'%(193+8*p+2*k,A+4,A))
    late = t_wo>=63
    for p in range(4): W(min(63,t_wo+2*p),wo_issue(p))
    if not late: W(min(64,t_wo+7+dep(t_wo+7)),wo_perm)
    ML='buffer_load_dwordx2 v[24:25], v26, s[48:51], s67 offen offset:2048 sc1'
    def ml1():
        a('s_lshl_b32 s67, s3, 15'); a('s_add_u32 s67, s67, %d'%REC1); a('s_lshr_b32 s5, s4, 2'); a('s_lshl_b32 s5, s5, 3')
        a('v_lshl_add_u32 v26, v19, 12, s5'); st['ml']=vm(ML)
        a('s_lshl_b32 s5, s4, 8'); a('v_lshlrev_b32 v27, 12, v19'); a('v_lshl_add_u32 v27, v16, 2, v27'); a('v_lshl_add_u32 v27, v3, 5, v27'); a('v_add_u32 v27, s5, v27')
        a('v_mul_u32_u24 v28, %d, v3'%WS); a('v_lshl_add_u32 v28, v1, 4, v28')
        a('v_and_b32 v29, 3, v1'); a('v_mul_u32_u24 v29, %d, v29'%(2*WS)); a('v_bfe_u32 v30, v1, 2, 1'); a('v_mul_u32_u24 v30, %d, v30'%DH); a('v_add_u32 v29, v29, v30')
        a('v_lshl_add_u32 v29, v16, 4, v29'); a('v_lshl_add_u32 v29, v3, 7, v29')
        a('v_lshlrev_b32 v30, 2, v0')
        a('s_lshl_b32 s68, s53, 17'); a('s_add_u32 s68, s68, %d'%REC2); a('s_lshl_b32 s5, s55, 7'); a('s_add_u32 s68, s68, s5')
        a('v_lshlrev_b32 v31, 11, v19'); a('v_lshl_add_u32 v31, v16, 4, v31')
        a('s_mul_i32 s5, s53, 896'); a('s_lshl_b32 s7, s55, 6'); a('s_add_u32 s5, s5, s7'); a('v_lshl_add_u32 v32, v16, 3, s5')
        for k in range(1,8): a('s_add_u32 s%d, s68, %d'%(68+k,16384*k))
        vm('buffer_load_dwordx2 v[34:35], v32, s[36:39], 0 offen')
    def ml2():
        wait(st['ml']); spin('L_mls',[ML],[24,25])
        a('v_mov_b32 v36, v24')
        for c in (Q1,Q2,HM): dpp('v_max_f32',36,36,36,c)
        a('v_sub_f32 v24, v24, v36'); a('v_mul_f32 v24, s66, v24'); a('v_exp_f32 v24, v24'); a('v_mul_f32 v25, v24, v25')
        for c in (Q1,Q2,HM): dpp('v_add_f32',25,25,25,c)
        a('v_rcp_f32 v25, v25'); a('v_mul_f32 v33, v24, v25')
    W(t_ml,ml1); W(min(63,t_ml+dep(t_ml)+1),ml2)
    for t in range(t0,65):
        if t<64:
            if t-dep(t)>=0: wait(ms[t-dep(t)])
            issue(t)
        for f in work[t]: f()
    for t in range(65,70): assert not work[t]
    stamp(4)
    def xred(base,src,soff,lab):
        a('ds_write_b128 v28, v[%d:%d] offset:%d'%(src,src+3,base)); a('ds_write_b128 v28, v[%d:%d] offset:%d'%(src+4,src+7,base+DH))
        lg(); a('s_barrier')
        if lab: a('s_cmp_eq_u32 s52, 7'); a('s_cbranch_scc1 '+lab)
        a('ds_read_b128 v[80:83], v29 offset:%d'%base); a('ds_read_b128 v[84:87], v29 offset:%d'%(base+WS)); lg()
        a('v_pk_add_f32 v[80:81], v[80:81], v[84:85]'); a('v_pk_add_f32 v[82:83], v[82:83], v[86:87]')
        for c in (Q1,Q2):
            for d in range(4): dpp('v_add_f32',80+d,80+d,80+d,c)
        a('s_mov_b32 exec_lo, 0x11111111'); a('s_mov_b32 exec_hi, 0x11111111')
        a('buffer_store_dwordx4 v[80:83], v30, s[48:51], %s offen sc1'%soff)
    for d in range(8): a('v_permlane32_swap_b32 v%d, v%d'%(64+d,72+d))
    for d in range(0,8,2): a('v_pk_add_f32 v[%d:%d], v[%d:%d], v[%d:%d]'%(64+d,65+d,64+d,65+d,72+d,73+d))
    xred(OR,64,'s62',None)
    a('s_mov_b64 exec, -1')
    OL='buffer_load_dword v24, v27, s[48:51], s67 offen sc1'
    a(OL)
    if late: cnt[0]+=2; wo_perm()
    a('s_waitcnt vmcnt(0)'); spin('L_os',[OL],[24])
    stamp(5)
    a('v_mul_f32 v24, v24, v33')
    for c in (Q1,Q2,HM): dpp('v_add_f32',24,24,24,c)
    a('v_mov_b32_dpp v25, v24 row_ror:8 row_mask:0xf bank_mask:0xf'); a('v_cvt_pk_bf16_f32 v24, v24, v25')
    for p in range(4): a('v_readlane_b32 s%d, v24, %d'%(76+p,16*p))
    for p in range(4):
        for d in range(8): a('v_dot2_f32_bf16 v%d, v%d, s%d, v%d'%(48+d,192+8*p+d,76+p,48+d))
    xred(OP,48,'s63','L_fin')
    a('s_branch L_done')
    a('L_fin:')
    a('s_cmp_ge_u32 s55, 14'); a('s_cbranch_scc1 L_done')
    FL=['buffer_load_dwordx4 v[%d:%d], v31, s[48:51], s%d offen sc1'%(96+4*k,99+4*k,68+k) for k in range(8)]
    for l in FL: a(l)
    a('s_waitcnt vmcnt(0)'); spin('L_fs',FL,list(range(96,128)))
    for s in (16,8,4):
        for k in range(0,s,2): a('v_pk_add_f32 v[%d:%d], v[%d:%d], v[%d:%d]'%(96+k,97+k,96+k,97+k,96+s+k,97+s+k))
    a('v_lshlrev_b32 v36, 16, v34'); a('v_and_b32 v37, 0xffff0000, v34'); a('v_lshlrev_b32 v38, 16, v35'); a('v_and_b32 v39, 0xffff0000, v35')
    for c in (Q1,Q2,HM):
        for d in range(4): dpp('v_add_f32',96+d,96+d,96+d,c)
    a('v_pk_add_f32 v[96:97], v[96:97], v[36:37]'); a('v_pk_add_f32 v[98:99], v[98:99], v[38:39]')
    a('v_cvt_pk_bf16_f32 v96, v96, v97'); a('v_cvt_pk_bf16_f32 v97, v98, v99')
    a('s_mov_b32 exec_lo, 0x01010101'); a('s_mov_b32 exec_hi, 0x01010101')
    a('buffer_store_dwordx2 v[96:97], v32, s[40:43], 0 offen')
    a('L_done:')
    if stamps:
        stamp(6); a('s_getreg_b32 s97, hwreg(HW_REG_XCC_ID)'); srd(8,86,'0x20000000',1<<20)
        a('s_lshl_b32 s5, s2, 3'); a('s_add_u32 s5, s5, s52'); a('s_lshl_b32 s5, s5, 5'); a('s_mov_b64 exec, 1')
        for k in range(8): a('v_mov_b32 v%d, s%d'%(8+k,90+k))
        a('buffer_store_dwordx4 v[8:11], off, s[8:11], s5'); a('buffer_store_dwordx4 v[12:15], off, s[8:11], s5 offset:16')
    if hold and gmin:
        a('s_mov_b64 exec, -1'); a('buffer_load_dword v20, off, s[44:47], 0 offset:128 sc1'); a('s_waitcnt vmcnt(0)'); a('v_readfirstlane_b32 s90, v20'); a('s_not_b32 s90, s90')
    if hold:
        a('L_hold:'); a('s_memrealtime s[88:89]'); lg(); a('s_sub_u32 s5, s88, s90'); a('s_cmp_lt_u32 s5, %d'%hold); a('s_cbranch_scc1 L_hold')
    if stamps==2:
        a('s_cmp_lg_u32 s52, 7'); a('s_cbranch_scc1 L_end'); a('s_not_b32 s97, s90'); a('s_mov_b64 exec, 0xff')
        for k in range(8): a('v_writelane_b32 v20, s%d, %d'%(90+k,k))
        a('v_lshlrev_b32 v21, 2, v1'); a('buffer_atomic_umax v20, v21, s[44:47], 0 offen offset:32 sc1')
    a('L_end:')
    ref=open('parallel_sum__sliding_block_cached__swiglu_ffn__decode.s.ref').read().split('\n')
    i0=[i for i,l in enumerate(ref) if l.startswith(KN+':')][0]; i1=[i for i,l in enumerate(ref) if l.startswith('s_endpgm')][0]
    hdr=['; @launch grid=(256,1,1) block=(512,1,1) lds=%d'%LDS if l.startswith('; @launch') else l for l in ref[:i0+1]]
    body=[l if l.endswith(':') else '    '+l for l in pad(L)]
    return '\n'.join(hdr+body+ref[i1:])
if __name__=='__main__':
    from asm import build
    name=sys.argv[1]; kw=eval('dict(%s)'%(sys.argv[2] if len(sys.argv)>2 else ''))
    open(name+'.s','w').write(gen(**kw)); build(name+'.s',name+'.co'); print('ok',LDS)
```

```python
import sys
sys.path.insert(0,'exp'); sys.path.insert(0,'k')
from hz import pad
KN="parallel_sum__sliding_block_cached__swiglu_ffn__decode_kernel"
XN=0; QP=12288; QB=6144; GU=7168; MX=9216; LS=9280; PP=9472; OR=12288; WS=2320; DH=1152; OP=OR+8*WS; LDS=OP+8*WS
GP=0x40000; REC1=0x100000; REC2=0x200000
def gen(depth=4, burst=4, nt='nt', wnt='', stamps=False, t_gu=8, t_poll=19, t_wd=34, t_wo=40, t_ml=54, pf=1, gap=1000, arr=0, shard=0, t_q=1, t_m=6, tst=(12,20,25,29), gmin=0, hold=0, d1=4, t_up=40, slope=1, kpt=3, ont='', drop='', bar0=1, pro=0, xnt='', qnt='', t_ar=2):
    L=[]; auto=[0]; acc=[0]; nxt=[burst]
    def a(x):
        L.append(x)
        if auto[0] and x.startswith('v_'):
            acc[0]+=1
            if acc[0]>=auto[0]: acc[0]=0; issue(nxt[0]); nxt[0]+=1
    cnt=[0]
    def vm(s): a(s); cnt[0]+=1; return cnt[0]
    def wait(m): a('s_waitcnt vmcnt(%d)'%min(63,cnt[0]-m))
    def lg(): a('s_waitcnt lgkmcnt(0)')
    def stamp(k,p=0):
        if stamps and (p==pro or k in (1,6)): a('s_memrealtime s[88:89]'); lg(); a('s_mov_b32 s%d, s88'%(90+k))
    def srd(d,b,off,n):
        if off is None: a('s_mov_b32 s%d, s%d'%(d,b)); a('s_mov_b32 s%d, s%d'%(d+1,b+1))
        else: a('s_add_u32 s%d, s%d, %s'%(d,b,off)); a('s_addc_u32 s%d, s%d, 0'%(d+1,b+1))
        a('s_mov_b32 s%d, %s'%(d+2,n)); a('s_mov_b32 s%d, 0x20000'%(d+3))
    def rb(v): a('v_cvt_pk_bf16_f32 v%d, v%d, v%d'%(v,v,v)); a('v_and_b32 v%d, 0xffff0000, v%d'%(v,v))
    def dpp(op,d,s0,s1,ctl,bank=0xf): a('%s_dpp v%d, v%d, v%d %s row_mask:0xf bank_mask:0x%x'%(op,d,s0,s1,ctl,bank))
    Q1='quad_perm:[1,0,3,2]'; Q2='quad_perm:[2,3,0,1]'; HM='row_half_mirror'
    def merge(lv,x,y,t):
        if lv==0: a('v_permlane16_swap_b32 v%d, v%d'%(x,y)); a('v_add_f32 v%d, v%d, v%d'%(x,x,y))
        elif lv==1: dpp('v_add_f32',x,x,x,'row_ror:8',0x3); dpp('v_add_f32',x,y,y,'row_ror:8',0xc)
        elif lv==2: dpp('v_add_f32',x,x,x,HM,0x5); dpp('v_add_f32',x,y,y,HM,0xa)
        else:
            m='s[56:57]' if lv==3 else 's[58:59]'
            a('v_cndmask_b32 v%d, v%d, v%d, %s'%(t,y,x,m)); a('v_cndmask_b32 v%d, v%d, v%d, %s'%(x,x,y,m))
            dpp('v_add_f32',x,t,x,Q2 if lv==3 else Q1)
    def red32(op,x,t):
        for c in ('row_ror:8','row_ror:4','row_ror:2','row_ror:1'): dpp(op,x,x,x,c)
        a('v_mov_b32 v%d, v%d'%(t,x)); a('v_permlane16_swap_b32 v%d, v%d'%(x,t)); a('%s v%d, v%d, v%d'%(op,x,x,t))
    def spin(name,load,rs):
        a('s_mov_b32 s61, 20000')
        a(name+'_c:')
        chk(rs); a('s_cbranch_vccz %s_d'%name)
        a('s_sub_u32 s61, s61, 1'); a('s_cbranch_scc1 %s_d'%name)
        for l in load: a(l)
        a('s_waitcnt vmcnt(0)'); a('s_branch %s_c'%name)
        a(name+'_d:')
    def chk(rs):
        if len(rs)==1: a('v_cmp_eq_u32 vcc, -1, v%d'%rs[0]); return
        a('v_max_u32 v7, v%d, v%d'%(rs[0],rs[1]))
        for k in range(2,len(rs),2): a('v_max3_u32 v7, v7, v%d, v%d'%(rs[k],rs[k+1]))
        a('v_cmp_eq_u32 vcc, -1, v7')
    a('s_cmp_ge_u32 s2, 256'); a('s_cbranch_scc1 L_end')
    a('s_load_dwordx16 s[64:79], s[0:1], 0'); a('s_load_dwordx8 s[80:87], s[0:1], 64')
    if stamps: a('s_memrealtime s[88:89]')
    if pf:
        a('s_getpc_b64 s[4:5]'); a('v_lshlrev_b32 v42, 6, v0'); a('v_min_u32 v42, L_end-%s-64, v42'%KN); vm('global_load_dword v43, v42, s[4:5]')
    a('v_and_b32 v1, 63, v0'); a('v_lshrrev_b32 v3, 6, v0'); a('v_readfirstlane_b32 s52, v3'); a('v_lshlrev_b32 v2, 4, v0')
    a('s_lshr_b32 s3, s2, 3'); a('s_and_b32 s4, s2, 7')
    a('s_lshl_b32 s5, s3, 23'); a('s_lshl_b32 s6, s4, 18'); a('s_add_u32 s5, s5, s6'); a('s_add_u32 s5, s5, %d'%(12288*512))
    a('s_lshr_b32 s53, s2, 6'); a('s_and_b32 s55, s2, 63')
    a('s_mul_i32 s6, s53, %d'%(112*8192)); a('s_lshl_b32 s7, s55, 7'); a('s_add_u32 s6, s6, s7'); a('s_sub_u32 s7, %d, s7'%(112*8192))
    a('s_cmp_ge_u32 s55, 28'); a('s_cselect_b32 s56, 28, 0'); a('s_cselect_b32 s57, 4, 0'); a('s_sub_u32 s56, s55, s56')
    a('s_mul_i32 s58, s53, %d'%(112*3584)); a('s_lshl_b32 s59, s56, 7'); a('s_add_u32 s58, s58, s59'); a('s_sub_u32 s59, %d, s59'%(112*3584))
    a('s_cmp_ge_u32 s55, 56'); a('s_cselect_b32 s59, 0, s59')
    a('v_mul_u32_u24 v4, 896, v3'); a('v_lshl_add_u32 v4, v1, 4, v4')
    a('v_lshrrev_b32 v16, 3, v1'); a('v_and_b32 v19, 7, v1'); a('v_lshl_add_u32 v6, v3, 4, v16')
    a('v_lshlrev_b32 v22, 13, v6'); a('v_lshl_add_u32 v22, v19, 4, v22')
    a('v_mul_u32_u24 v17, 3584, v6'); a('v_lshl_add_u32 v17, v19, 4, v17')
    a('s_mov_b32 s54, 0x10000'); a('s_mov_b32 s61, 28672'); a('s_mov_b32 s60, 0'); a('s_cmp_ge_u32 s55, 28')
    lg()
    if stamps: a('s_mov_b32 s90, s88')
    a('s_cselect_b32 s76, s78, s76'); a('s_cselect_b32 s77, s79, s77')
    srd(36,64,None,3584); srd(24,76,'s58',0 if 'g' in drop else 's59'); srd(16,70,'s6',0 if 'q' in drop else 's7'); srd(8,66,'s5',1<<18); srd(48,86,None,0x400000)
    mx=vm('buffer_load_dwordx4 v[96:99], v4, s[36:39], 0 offen '+xnt)
    vm('buffer_load_dwordx4 v[52:55], v22, s[16:19], 0 offen '+qnt)
    vm('buffer_load_dwordx4 v[56:59], v22, s[16:19], s54 offen '+qnt)
    vm('buffer_load_dwordx4 v[44:47], v17, s[24:27], 0 offen '+wnt)
    mq=vm('buffer_load_dwordx4 v[48:51], v17, s[24:27], s61 offen '+wnt)
    a('s_lshl_b32 s62, s2, 12'); a('s_add_u32 s62, s62, %d'%REC1)
    a('s_lshl_b32 s63, s2, 11'); a('s_add_u32 s63, s63, %d'%REC2)
    a('s_cmp_lg_u32 s52, %d'%(9 if 'c' in drop else 7)); a('s_cbranch_scc1 L_noclr')
    for k in range(4): a('v_mov_b32 v%d, -1'%(60+k))
    a('v_lshlrev_b32 v64, 4, v1')
    for o in (0,1024,2048): a('buffer_store_dwordx4 v[60:63], v64, s[48:51], s62 offen offset:%d sc1'%o)
    for o in (0,1024): a('buffer_store_dwordx4 v[60:63], v64, s[48:51], s63 offen offset:%d sc1'%o)
    a('L_noclr:')
    a('v_mov_b32 v60, -1'); a('v_lshlrev_b32 v61, 2, v1'); a('ds_write_b32 v61, v60 offset:%d'%MX)
    mclr=cnt[0]
    ms={}
    def slot(t): return 128+4*(t if t<32 else (t-32)%16)
    def issue(t):
        if t==32: a('s_mov_b32 s60, 0')
        ms[t]=vm('buffer_load_dwordx4 v[%d:%d], v2, s[%d:%d], s60 offen %s'%(slot(t),slot(t)+3,8 if t<32 else 12,11 if t<32 else 15,nt))
        a('s_add_u32 s60, s60, 0x2000')
    if bar0: a('s_barrier')
    for t in range(burst): issue(t)
    srd(12,68,'s5',1<<18); srd(44,84,None,256); srd(40,82,None,3584)
    a('s_mul_i32 s5, s55, %d'%(28*896)); srd(32,80,'s5',0 if 'o' in drop else 28*896)
    a('s_mul_i32 s5, s55, %d'%(64*896)); srd(20,72,'s5',0 if 'o' in drop else 64*896)
    a('s_lshl_b32 s6, s53, 16'); a('s_lshl_b32 s5, s55, 8'); a('s_add_u32 s6, s6, s5')
    a('s_add_u32 s7, s57, s53'); a('s_lshl_b32 s7, s7, 15'); a('s_lshl_b32 s5, s56, 8'); a('s_add_u32 s7, s7, s5'); a('s_add_u32 s7, s7, %d'%GP)
    a('s_mov_b32 s56, 0xcccccccc'); a('s_mov_b32 s57, s56'); a('s_mov_b32 s58, 0xaaaaaaaa'); a('s_mov_b32 s59, s58')
    a('s_mov_b32 s64, 0x05040100'); a('s_mov_b32 s65, 0x07060302'); a('s_mov_b32 s66, 0x3db8aa3b')
    a('s_mul_i32 s5, s53, 224'); a('v_lshl_add_u32 v6, v6, 1, s5'); a('v_lshrrev_b32 v23, 5, v1')
    a('v_and_b32 v5, 31, v1'); a('v_bfrev_b32 v5, v5'); a('v_lshrrev_b32 v5, 27, v5')
    a('v_lshrrev_b32 v20, 4, v1'); a('v_lshlrev_b32 v21, 8, v20'); a('v_lshl_add_u32 v21, v19, 5, v21'); a('v_and_b32 v18, 8, v1'); a('v_lshl_add_u32 v21, v18, 1, v21'); a('v_lshl_add_u32 v21, v3, 10, v21')
    stamp(2,1)
    a('s_cmp_ge_u32 s52, 4'); a('s_cbranch_scc1 L_noln')
    def red64(x,t):
        a('v_mov_b32 v%d, v%d'%(t,x)); a('v_permlane32_swap_b32 v%d, v%d'%(x,t)); a('v_add_f32 v%d, v%d, v%d'%(x,x,t)); red32('v_add_f32',x,t)
    a('v_mov_b32 v60, 0'); a('v_mov_b32 v62, 0'); a('s_mov_b32 exec_hi, 0x00ffffff')
    wait(mx)
    for k in range(4):
        a('v_lshlrev_b32 v%d, 16, v%d'%(24+2*k,96+k)); a('v_and_b32 v%d, 0xffff0000, v%d'%(25+2*k,96+k))
    a('v_pk_add_f32 v[32:33], v[24:25], v[26:27]'); a('v_pk_add_f32 v[34:35], v[28:29], v[30:31]'); a('v_pk_add_f32 v[32:33], v[32:33], v[34:35]')
    a('v_add_f32 v60, v32, v33'); a('s_mov_b32 exec_hi, -1'); red64(60,61)
    a('v_mul_f32 v60, 0xbb124925, v60'); a('v_mov_b32 v61, v60'); a('s_mov_b32 exec_hi, 0x00ffffff')
    for k in range(4): a('v_pk_add_f32 v[%d:%d], v[%d:%d], v[60:61]'%(32+2*k,33+2*k,24+2*k,25+2*k))
    a('v_pk_mul_f32 v[32:33], v[32:33], v[32:33]'); a('v_pk_mul_f32 v[34:35], v[34:35], v[34:35]')
    a('v_pk_fma_f32 v[32:33], v[36:37], v[36:37], v[32:33]'); a('v_pk_fma_f32 v[34:35], v[38:39], v[38:39], v[34:35]'); a('v_pk_add_f32 v[32:33], v[32:33], v[34:35]')
    a('v_add_f32 v62, v32, v33'); a('s_mov_b32 exec_hi, -1'); red64(62,63)
    a('v_mul_f32 v62, 0x3b124925, v62'); rb(62); rb(60)
    a('v_add_f32 v62, 0x3727c5ac, v62'); rb(62); a('v_sqrt_f32 v62, v62'); rb(62); a('v_rcp_f32 v63, v62')
    for k in range(8): a('v_add_f32 v%d, v60, v%d'%(24+k,24+k))
    for k in range(4): a('v_cvt_pk_bf16_f32 v%d, v%d, v%d'%(96+k,24+2*k,25+2*k))
    for k in range(4):
        a('v_lshlrev_b32 v%d, 16, v%d'%(24+2*k,96+k)); a('v_and_b32 v%d, 0xffff0000, v%d'%(25+2*k,96+k))
    for k in range(8): a('v_mul_f32 v%d, v63, v%d'%(32+k,24+k))
    for k in range(8): a('v_fma_f32 v%d, -v%d, v62, v%d'%(24+k,32+k,24+k))
    for k in range(8): a('v_fmac_f32 v%d, v%d, v63'%(32+k,24+k))
    for k in range(4): a('v_cvt_pk_bf16_f32 v%d, v%d, v%d'%(96+k,32+2*k,33+2*k))
    a('s_mov_b32 exec_hi, 0x00ffffff'); a('ds_write_b128 v4, v[96:99] offset:%d'%XN); a('s_mov_b32 exec_hi, -1'); lg()
    a('L_noln:'); a('s_barrier'); stamp(3,1)
    auto[0]=gap
    for b in range(4):
        a('ds_read_u16 v%d, v6 offset:%d'%(104+b,XN+896*b)); a('ds_read_u16 v%d, v6 offset:%d'%(108+b,XN+896*b+16))
    stamp(4,1); wait(mq); stamp(5,1)
    lg()
    for b in range(4): a('v_lshl_or_b32 v%d, v%d, 16, v%d'%(104+b,108+b,104+b))
    for m,A in enumerate((52,44)):
        for k in range(4):
            a('v_perm_b32 v%d, v%d, v%d, s64'%(96+2*k,A+4+k,A+k)); a('v_perm_b32 v%d, v%d, v%d, s65'%(97+2*k,A+4+k,A+k))
        for b in (0,2,1,3):
            for c in range(8): a('v_dot2_f32_bf16 v%d, v%d, v%d, 0'%(64+8*b+c,96+c,104+b))
        for i in range(16): a('v_permlane32_swap_b32 v%d, v%d'%(64+i,80+i))
        for i in range(0,16,2): a('v_pk_add_f32 v[%d:%d], v[%d:%d], v[%d:%d]'%(64+i,65+i,64+i,65+i,80+i,81+i))
        for i in range(8): a('v_permlane16_swap_b32 v%d, v%d'%(64+i,72+i))
        for i in range(0,8,2): a('v_pk_add_f32 v[%d:%d], v[%d:%d], v[%d:%d]'%(64+i,65+i,64+i,65+i,72+i,73+i))
        for i in range(4): dpp('v_add_f32',112+4*m+i,64+i,64+i,'row_ror:8',0x3)
        for i in range(4): dpp('v_add_f32',112+4*m+i,68+i,68+i,'row_ror:8',0xc)
        a('ds_write_b128 v21, v[%d:%d] offset:%d'%(112+4*m,115+4*m,QP+8192*m))
    auto[0]=0; wait(mclr); lg(); a('s_barrier')
    a('s_cmp_lg_u32 s52, %d'%(9 if 's' in drop else 0)); a('s_cbranch_scc1 L_noq')
    for m in range(2):
        for k in range(7): a('ds_read_b128 v[%d:%d], v2 offset:%d'%(64+28*m+4*k,67+28*m+4*k,QP+8192*m+1024*k))
    a('v_and_b32 v21, 15, v1'); a('v_lshlrev_b32 v21, 4, v21'); a('v_lshl_add_u32 v22, v20, 14, v21'); a('v_lshl_add_u32 v21, v20, 13, v21')
    for m in range(2):
        a('s_waitcnt lgkmcnt(%d)'%(7-7*m)); B=64+28*m
        for x,y in ((0,1),(2,3),(4,5),(0,2),(4,6),(0,4)):
            for e in (0,2): a('v_pk_add_f32 v[%d:%d], v[%d:%d], v[%d:%d]'%(B+4*x+e,B+4*x+e+1,B+4*x+e,B+4*x+e+1,B+4*y+e,B+4*y+e+1))
        if m==0: a('buffer_store_dwordx4 v[64:67], v22, s[48:51], s6 offen sc1')
        else: a('s_cmp_ge_u32 s55, 56'); a('s_cbranch_scc1 L_noq'); a('buffer_store_dwordx4 v[92:95], v21, s[48:51], s7 offen sc1')
    a('L_noq:'); mst=cnt[0]; t0=nxt[0]; print('t0',t0)
    stamp(1)
    work={t:[] for t in range(burst,70)}
    st={}
    def W(t,f): work[t].append(f)
    def dep(t): return min(d1,depth+max(0,(t-t_up)//slope))
    def arrive():
        a('s_cmp_lg_u32 s52, 0'); a('s_cbranch_scc1 L_ar')
        if shard==0: a('s_lshr_b32 s5, s4, 1')
        else: a('s_and_b32 s5, s3, 3')
        a('s_lshl_b32 s78, s5, 6'); a('s_mov_b32 s79, 1'); a('v_mov_b32 v20, 1'); wait(mst)
        if arr==0: a('s_atomic_add s79, s[84:85], s78')
        else:
            a('s_mov_b64 exec, 1')
            if arr==1: a('buffer_atomic_add v20, off, s[44:47], s78 sc1')
            else: a('buffer_store_byte v20, off, s[44:47], s2 sc1')
            a('s_mov_b64 exec, -1')
        a('L_ar:')
    if 'a' not in drop: W(t0+t_ar,arrive)
    PL='buffer_load_dword v21, v22, s[44:47], 0 offen sc1'
    def poll1():
        a('s_cmp_lg_u32 s52, 0'); a('s_cbranch_scc1 L_p1')
        if arr==2: a('v_lshlrev_b32 v22, 2, v1')
        else: a('v_and_b32 v22, 3, v1'); a('v_lshlrev_b32 v22, 6, v22')
        a(PL); a('L_p1:'); st['p']=cnt[0]
    def poll2():
        a('s_cmp_lg_u32 s52, 0'); a('s_cbranch_scc1 L_p2'); wait(st['p'])
        a('s_mov_b32 s61, 20000'); a('L_p2c:'); a('v_cmp_ne_u32 vcc, %s, v21'%('0x01010101' if arr==2 else '64')); a('s_cbranch_vccz L_p2d')
        a('s_sub_u32 s61, s61, 1'); a('s_cbranch_scc1 L_p2d'); a(PL); a('s_waitcnt vmcnt(0)'); a('s_branch L_p2c')
        a('L_p2d:'); a('s_lshl_b32 s5, s3, 11')
        for k in range(4):
            for h in range(2): a('buffer_load_dwordx4 v[%d:%d], v2, s[48:51], s5 offen offset:%d sc1'%(64+8*k+4*h,67+8*k+4*h,1024*h))
            a('s_add_u32 s5, s5, 0x10000')
        a('s_lshl_b32 s5, s53, 13'); a('s_mul_i32 s7, s55, 112'); a('s_add_u32 s5, s5, s7'); a('s_add_u32 s5, s5, %d'%GP)
        a('v_min_u32 v21, 6, v16'); a('v_lshlrev_b32 v21, 4, v21'); a('v_lshl_add_u32 v21, v19, 15, v21')
        a('buffer_load_dwordx4 v[8:11], v21, s[48:51], s5 offen sc1'); a('L_p2:'); st['p']=cnt[0]
    def poll3():
        a('s_cmp_lg_u32 s52, 0'); a('s_cbranch_scc1 L_p3'); wait(st['p'])
        for x,y in ((0,1),(2,3),(0,2)):
            for e in (0,2,4,6): a('v_pk_add_f32 v[%d:%d], v[%d:%d], v[%d:%d]'%(64+8*x+e,65+8*x+e,64+8*x+e,65+8*x+e,64+8*y+e,65+8*y+e))
        for e in range(4): a('v_cvt_pk_bf16_f32 v%d, v%d, v%d'%(64+e,64+2*e,65+2*e))
        a('v_lshlrev_b32 v61, 3, v1'); a('ds_write_b64 v61, v[64:65] offset:%d'%QB); a('ds_write_b64 v61, v[66:67] offset:%d'%(QB+512))
        a('ds_write_b128 v2, v[8:11] offset:%d'%GU); a('v_mov_b32 v61, 0'); a('ds_write_b32 v61, v61 offset:%d'%(MX+128)); a('L_p3:')
    def poll4():
        a('v_and_b32 v60, 31, v1'); a('v_lshlrev_b32 v60, 4, v60'); a('v_mov_b32 v61, 0'); a('s_mov_b32 s61, 100000')
        a('L_p4:'); a('ds_read_b32 v7, v61 offset:%d'%(MX+128))
        a('ds_read_b128 v[8:11], v60 offset:%d'%QB); a('ds_read_b128 v[12:15], v60 offset:%d'%(QB+512)); lg()
        a('v_cmp_eq_u32 vcc, -1, v7'); a('s_cbranch_vccz L_p4d'); a('s_sub_u32 s61, s61, 1'); a('s_cbranch_scc0 L_p4'); a('L_p4d:'); stamp(2)
    st['p']=0
    if 'p' not in drop: W(t_poll,poll1); W(t_poll+4,poll2)
    W(t_poll+8,poll3); tq=t_poll+8+t_q; W(tq,poll4)
    stack=[[],[]]; pool=list(range(64,96))
    def kpair(i):
        def f():
            wait(ms[i+1])
            r=[[pool.pop(0),pool.pop(0)] for h in range(2)]
            for k in range(4):
                for e in range(2):
                    for h in range(2):
                        a('v_dot2_f32_bf16 v%d, v%d, v%d, %s'%(r[h][e],slot(i+e)+k,8+4*h+k,'0' if k==0 else 'v%d'%r[h][e]))
            for h in range(2):
                merge(0,r[h][0],r[h][1],60); pool.append(r[h][1]); stack[h].append((1,r[h][0]))
            while len(stack[0])>1 and stack[0][-1][0]==stack[0][-2][0]:
                for h in range(2):
                    lv,y=stack[h].pop(); _,x=stack[h].pop(); merge(lv,x,y,60+h); pool.append(y); stack[h].append((lv+1,x))
        return f
    t=tq; n=0
    for i in range(0,32,2):
        while i+1>t-dep(t) or n>=kpt: t+=1; n=0
        W(t,kpair(i)); n+=1
        if i<16: assert t<32+i
    tk=t
    def soft():
        r0=stack[0][0][1]; r1=stack[1][0][1]
        a('v_cvt_pk_bf16_f32 v60, v%d, v%d'%(r0,r1)); a('v_lshlrev_b32 v8, 16, v60'); a('v_and_b32 v9, 0xffff0000, v60')
        a('v_mov_b32 v10, v8'); a('v_mov_b32 v11, v9'); a('v_permlane32_swap_b32 v10, v11'); a('v_max_f32 v10, v10, v11'); red32('v_max_f32',10,11)
        a('v_readlane_b32 s76, v10, 0'); a('v_readlane_b32 s77, v10, 32')
        for h in range(2):
            a('v_subrev_f32 v%d, s%d, v%d'%(8+h,76+h,8+h)); a('v_mul_f32 v%d, s66, v%d'%(8+h,8+h)); a('v_exp_f32 v%d, v%d'%(8+h,8+h))
        a('v_cvt_pk_bf16_f32 v60, v8, v9')
        a('v_lshlrev_b32 v13, 8, v3'); a('v_lshl_add_u32 v13, v23, 7, v13'); a('v_lshl_add_u32 v14, v5, 1, v13')
        a('ds_write_b16 v14, v60 offset:%d'%PP); a('ds_write_b16_d16_hi v14, v60 offset:%d'%(PP+64))
        for k in range(8): a('ds_read_b128 v[%d:%d], v13 offset:%d'%(96+4*k,99+4*k,PP+16*k))
        a('v_permlane32_swap_b32 v8, v9'); a('v_add_f32 v11, v8, v9'); red32('v_add_f32',11,9)
        a('v_lshlrev_b32 v12, 3, v3'); a('v_lshl_add_u32 v12, v23, 6, v12'); a('ds_write_b64 v12, v[10:11] offset:%d'%MX); lg(); stamp(3)
    W(tk,soft)
    def vpair(i):
        def f():
            wait(ms[i+1]); j=(i-32)//2; A=slot(i); B=slot(i+1)
            for k in range(4):
                a('v_perm_b32 v%d, v%d, v%d, s64'%(80+2*k,B+k,A+k)); a('v_perm_b32 v%d, v%d, v%d, s65'%(81+2*k,B+k,A+k))
            for d in range(8):
                for h in range(2): a('v_dot2_f32_bf16 v%d, v%d, v%d, %s'%(64+8*h+d,80+d,96+16*h+j,'0' if j==0 else 'v%d'%(64+8*h+d)))
        return f
    for i in range(32,64,2):
        t=i+1
        while t<64 and t-dep(t)<i+1: t+=1
        t=max(tk,t); assert t<i+16 or i+16>63; W(t,vpair(i))
    def mlpub():
        a('v_lshlrev_b32 v13, 3, v19'); a('v_lshl_add_u32 v13, v23, 6, v13'); a('s_mov_b32 s61, 100000')
        a('L_m1:'); a('ds_read_b64 v[24:25], v13 offset:%d'%MX); lg()
        a('v_cmp_eq_u32 vcc, -1, v25'); a('s_cbranch_vccz L_m1d'); a('s_sub_u32 s61, s61, 1'); a('s_cbranch_scc0 L_m1'); a('L_m1d:')
        a('v_mov_b32 v88, v24')
        for c in (Q1,Q2,HM): dpp('v_max_f32',88,88,88,c)
        a('v_sub_f32 v24, v24, v88'); a('v_sub_f32 v90, v10, v88'); a('v_mul_f32 v24, s66, v24'); a('v_mul_f32 v90, s66, v90')
        a('v_exp_f32 v24, v24'); a('v_exp_f32 v90, v90'); a('v_mul_f32 v89, v24, v25'); a('v_mov_b32 v91, v90')
        for c in (Q1,Q2,HM): dpp('v_add_f32',89,89,89,c)
        a('s_cmp_lg_u32 s52, 0'); a('s_cbranch_scc1 L_ml'); a('v_lshlrev_b32 v13, 3, v23')
        a('s_mov_b32 exec_lo, 1'); a('s_mov_b32 exec_hi, 1'); a('buffer_store_dwordx2 v[88:89], v13, s[48:51], s62 offen offset:2048 sc1'); a('s_mov_b64 exec, -1'); a('L_ml:')
    W(tk+t_m,mlpub)
    t_wd=max(t_wd,tk+1); t_wo=max(t_wo,tk+1)
    def wd_issue():
        a('v_mul_u32_u24 v40, 3584, v3'); a('v_lshlrev_b32 v41, 4, v1'); a('v_cmp_gt_u32 vcc, 56, v1'); a('v_mov_b32 v42, 0x40000000'); a('v_cndmask_b32 v41, v42, v41, vcc')
        a('v_lshl_add_u32 v43, v40, 1, v41'); a('v_add_u32 v44, 3584, v43'); a('v_add_u32 v41, v40, v41')
        for r in range(4): st['wd']=vm('buffer_load_dwordx4 v[%d:%d], v41, s[32:35], 0 offen offset:%d %s'%(232+4*r,235+4*r,896*r,ont))
    W(t_wd,wd_issue)
    def wd_comp():
        a('v_lshlrev_b32 v45, 4, v19'); a('v_lshl_add_u32 v45, v3, 7, v45')
        a('ds_read_b128 v[24:27], v45 offset:%d'%GU); lg()
        for c in (Q1,Q2):
            for d in range(4): dpp('v_add_f32',24+d,24+d,24+d,c)
        for d in range(4): a('v_mov_b32_dpp v%d, v%d row_half_mirror row_mask:0xf bank_mask:0xf'%(28+d,24+d))
        for d in range(8): rb(24+d)
        for d in range(4): a('v_mul_f32 v%d, 0xbfb8aa3b, v%d'%(32+d,24+d))
        for d in range(4): a('v_exp_f32 v%d, v%d'%(32+d,32+d))
        for d in range(4): a('v_add_f32 v%d, 1.0, v%d'%(32+d,32+d))
        for d in range(4): a('v_rcp_f32 v%d, v%d'%(32+d,32+d))
        for d in range(4): a('v_mul_f32 v%d, v%d, v%d'%(24+d,24+d,32+d))
        for d in range(4): rb(24+d)
        for d in range(4): a('v_mul_f32 v%d, v%d, v%d'%(24+d,24+d,28+d))
        a('v_cvt_pk_bf16_f32 v24, v24, v25'); a('v_cvt_pk_bf16_f32 v25, v26, v27')
        a('v_readlane_b32 s76, v24, 0'); a('v_readlane_b32 s77, v25, 0')
        wait(st['wd'])
        for p in range(2):
            for k in range(4):
                A=232+8*p+k; a('v_perm_b32 v%d, v%d, v%d, s64'%(28+2*k,A+4,A)); a('v_perm_b32 v%d, v%d, v%d, s65'%(29+2*k,A+4,A))
            for d in range(8): a('v_dot2_f32_bf16 v%d, v%d, s%d, %s'%(48+d,28+d,76+p,'0' if p==0 else 'v%d'%(48+d)))
    W(max(t_wd+dep(t_wd)+1,tk+t_m+1),wd_comp); assert tk+t_m+1<t_ml
    def wo_issue(p):
        def f():
            for r in (2*p,2*p+1): st['wo']=vm('buffer_load_dwordx4 v[%d:%d], v%d, s[20:23], 0 offen offset:%d %s'%(200+4*r,203+4*r,43+(r>>2),896*(r&3),ont))
        return f
    def wo_perm():
        wait(st['wo'])
        for p in range(4):
            for k in range(4):
                A=200+8*p+k; a('v_perm_b32 v%d, v%d, v%d, s64'%(192+8*p+2*k,A+4,A)); a('v_perm_b32 v%d, v%d, v%d, s65'%(193+8*p+2*k,A+4,A))
    late = t_wo>=63
    for p in range(4): W(min(63,t_wo+2*p),wo_issue(p))
    if not late: W(min(64,t_wo+7+dep(t_wo+7)),wo_perm)
    ML='buffer_load_dwordx2 v[24:25], v26, s[48:51], s67 offen offset:2048 sc1'
    def ml1():
        a('s_lshl_b32 s67, s3, 15'); a('s_add_u32 s67, s67, %d'%REC1); a('s_lshr_b32 s5, s4, 2'); a('s_lshl_b32 s5, s5, 3')
        a('v_lshl_add_u32 v26, v19, 12, s5'); st['ml']=vm(ML)
        a('s_lshl_b32 s5, s4, 8'); a('v_lshlrev_b32 v27, 12, v19'); a('v_lshl_add_u32 v27, v16, 2, v27'); a('v_lshl_add_u32 v27, v3, 5, v27'); a('v_add_u32 v27, s5, v27')
        a('v_mul_u32_u24 v28, %d, v3'%WS); a('v_lshl_add_u32 v28, v1, 4, v28')
        a('v_and_b32 v29, 3, v1'); a('v_mul_u32_u24 v29, %d, v29'%(2*WS)); a('v_bfe_u32 v30, v1, 2, 1'); a('v_mul_u32_u24 v30, %d, v30'%DH); a('v_add_u32 v29, v29, v30')
        a('v_lshl_add_u32 v29, v16, 4, v29'); a('v_lshl_add_u32 v29, v3, 7, v29')
        a('v_lshlrev_b32 v30, 2, v0')
        a('s_lshl_b32 s68, s53, 17'); a('s_add_u32 s68, s68, %d'%REC2); a('s_lshl_b32 s5, s55, 7'); a('s_add_u32 s68, s68, s5')
        a('v_lshlrev_b32 v31, 11, v19'); a('v_lshl_add_u32 v31, v16, 4, v31')
        a('s_mul_i32 s5, s53, 896'); a('s_lshl_b32 s7, s55, 6'); a('s_add_u32 s5, s5, s7'); a('v_lshl_add_u32 v32, v16, 3, s5')
        for k in range(1,8): a('s_add_u32 s%d, s68, %d'%(68+k,16384*k))
        vm('buffer_load_dwordx2 v[34:35], v32, s[36:39], 0 offen')
    def ml2():
        wait(st['ml']); spin('L_mls',[ML],[24,25])
        a('v_mov_b32 v36, v24')
        for c in (Q1,Q2,HM): dpp('v_max_f32',36,36,36,c)
        a('v_sub_f32 v24, v24, v36'); a('v_mul_f32 v24, s66, v24'); a('v_exp_f32 v24, v24'); a('v_mul_f32 v25, v24, v25')
        for c in (Q1,Q2,HM): dpp('v_add_f32',25,25,25,c)
        a('v_rcp_f32 v25, v25'); a('v_mul_f32 v33, v24, v25')
    W(t_ml,ml1); W(min(63,t_ml+dep(t_ml)+1),ml2)
    for t in range(t0,65):
        if t<64:
            if t-dep(t)>=0: wait(ms[t-dep(t)])
            issue(t)
        for f in work[t]: f()
        if pro==2 and t in tst: stamp(2+tst.index(t),2)
    for t in range(65,70): assert not work[t]
    stamp(4)
    def xred(base,src,soff,lab):
        a('ds_write_b128 v28, v[%d:%d] offset:%d'%(src,src+3,base)); a('ds_write_b128 v28, v[%d:%d] offset:%d'%(src+4,src+7,base+DH))
        lg(); a('s_barrier')
        if lab: a('s_cmp_eq_u32 s52, 7'); a('s_cbranch_scc1 '+lab)
        a('ds_read_b128 v[80:83], v29 offset:%d'%base); a('ds_read_b128 v[84:87], v29 offset:%d'%(base+WS)); lg()
        a('v_pk_add_f32 v[80:81], v[80:81], v[84:85]'); a('v_pk_add_f32 v[82:83], v[82:83], v[86:87]')
        for c in (Q1,Q2):
            for d in range(4): dpp('v_add_f32',80+d,80+d,80+d,c)
        a('s_mov_b32 exec_lo, 0x11111111'); a('s_mov_b32 exec_hi, 0x11111111')
        a('buffer_store_dwordx4 v[80:83], v30, s[48:51], %s offen sc1'%soff)
    for d in range(8): a('v_permlane32_swap_b32 v%d, v%d'%(64+d,72+d))
    for d in range(0,8,2): a('v_pk_add_f32 v[%d:%d], v[%d:%d], v[%d:%d]'%(64+d,65+d,64+d,65+d,72+d,73+d))
    for d in range(0,8,2): a('v_pk_mul_f32 v[%d:%d], v[%d:%d], v[90:91]'%(64+d,65+d,64+d,65+d))
    xred(OR,64,'s62',None)
    a('s_mov_b64 exec, -1')
    OL='buffer_load_dword v24, v27, s[48:51], s67 offen sc1'
    a(OL)
    if late: cnt[0]+=2; wo_perm()
    a('s_waitcnt vmcnt(0)'); spin('L_os',[OL],[24])
    stamp(5)
    a('v_mul_f32 v24, v24, v33')
    for c in (Q1,Q2,HM): dpp('v_add_f32',24,24,24,c)
    a('v_mov_b32_dpp v25, v24 row_ror:8 row_mask:0xf bank_mask:0xf'); a('v_cvt_pk_bf16_f32 v24, v24, v25')
    for p in range(4): a('v_readlane_b32 s%d, v24, %d'%(76+p,16*p))
    for p in range(4):
        for d in range(8): a('v_dot2_f32_bf16 v%d, v%d, s%d, v%d'%(48+d,192+8*p+d,76+p,48+d))
    xred(OP,48,'s63','L_fin')
    a('s_branch L_done')
    a('L_fin:')
    a('s_cmp_ge_u32 s55, 14'); a('s_cbranch_scc1 L_done')
    FL=['buffer_load_dwordx4 v[%d:%d], v31, s[48:51], s%d offen sc1'%(96+4*k,99+4*k,68+k) for k in range(8)]
    for l in FL: a(l)
    a('s_waitcnt vmcnt(0)'); spin('L_fs',FL,list(range(96,128)))
    for s in (16,8,4):
        for k in range(0,s,2): a('v_pk_add_f32 v[%d:%d], v[%d:%d], v[%d:%d]'%(96+k,97+k,96+k,97+k,96+s+k,97+s+k))
    a('v_lshlrev_b32 v36, 16, v34'); a('v_and_b32 v37, 0xffff0000, v34'); a('v_lshlrev_b32 v38, 16, v35'); a('v_and_b32 v39, 0xffff0000, v35')
    for c in (Q1,Q2,HM):
        for d in range(4): dpp('v_add_f32',96+d,96+d,96+d,c)
    a('v_pk_add_f32 v[96:97], v[96:97], v[36:37]'); a('v_pk_add_f32 v[98:99], v[98:99], v[38:39]')
    a('v_cvt_pk_bf16_f32 v96, v96, v97'); a('v_cvt_pk_bf16_f32 v97, v98, v99')
    a('s_mov_b32 exec_lo, 0x01010101'); a('s_mov_b32 exec_hi, 0x01010101')
    a('buffer_store_dwordx2 v[96:97], v32, s[40:43], 0 offen')
    a('L_done:')
    if stamps:
        stamp(6); a('s_getreg_b32 s97, hwreg(HW_REG_XCC_ID)'); srd(8,86,'0x20000000',1<<20)
        a('s_lshl_b32 s5, s2, 3'); a('s_add_u32 s5, s5, s52'); a('s_lshl_b32 s5, s5, 5'); a('s_mov_b64 exec, 1')
        for k in range(8): a('v_mov_b32 v%d, s%d'%(8+k,90+k))
        a('buffer_store_dwordx4 v[8:11], off, s[8:11], s5'); a('buffer_store_dwordx4 v[12:15], off, s[8:11], s5 offset:16')
    if hold and gmin:
        a('s_mov_b64 exec, -1'); a('buffer_load_dword v20, off, s[44:47], 0 offset:128 sc1'); a('s_waitcnt vmcnt(0)'); a('v_readfirstlane_b32 s90, v20'); a('s_not_b32 s90, s90')
    if hold:
        a('L_hold:'); a('s_memrealtime s[88:89]'); lg(); a('s_sub_u32 s5, s88, s90'); a('s_cmp_lt_u32 s5, %d'%hold); a('s_cbranch_scc1 L_hold')
    if stamps==2:
        a('s_cmp_lg_u32 s52, 7'); a('s_cbranch_scc1 L_end'); a('s_not_b32 s97, s90'); a('s_mov_b64 exec, 0xff')
        for k in range(8): a('v_writelane_b32 v20, s%d, %d'%(90+k,k))
        a('v_lshlrev_b32 v21, 2, v1'); a('buffer_atomic_umax v20, v21, s[44:47], 0 offen offset:32 sc1')
    a('L_end:')
    ref=open('parallel_sum__sliding_block_cached__swiglu_ffn__decode.s.ref').read().split('\n')
    i0=[i for i,l in enumerate(ref) if l.startswith(KN+':')][0]; i1=[i for i,l in enumerate(ref) if l.startswith('s_endpgm')][0]
    hdr=['; @launch grid=(256,1,1) block=(512,1,1) lds=%d'%LDS if l.startswith('; @launch') else l for l in ref[:i0+1]]
    body=[l if l.endswith(':') else '    '+l for l in pad(L)]
    return '\n'.join(hdr+body+ref[i1:])
if __name__=='__main__':
    from asm import build
    name=sys.argv[1]; kw=eval('dict(%s)'%(sys.argv[2] if len(sys.argv)>2 else ''))
    open(name+'.s','w').write(gen(**kw)); build(name+'.s',name+'.co'); print('ok',LDS)
```

```python
import sys
sys.path.insert(0,'exp'); sys.path.insert(0,'k')
from hz import pad
KN="parallel_sum__sliding_block_cached__swiglu_ffn__decode_kernel"
XN=0; QP=12288; QB=6144; GU=7168; MX=9216; LS=9280; PP=9472; OR=12288; WS=2320; DH=1152; OP=OR+8*WS; LDS=OP+8*WS
GP=0x40000; CN=0x80000; REC1=0x100000; REC2=0x200000
def gen(depth=4, burst=5, nt='nt', wnt='nt', stamps=False, t_gu=8, t_poll=21, t_wd=34, t_wo=40, t_ml=58, pf=1, gap=50, wg_=1, wm_=5, dsch=None, wsp=0, vpt=3, prio={}, arr=0, nsh=32, shard=0, t_q=5, t_m=3, tst=(12,20,25,29), gmin=0, hold=0, d1=4, t_up=40, slope=1, kpt=2, ont='', drop='', bar0=1, pro=0, xnt='', qnt='nt', t_ar=2):
    L=[]; auto=[0]; acc=[0]; nxt=[burst]
    def a(x):
        L.append(x)
        if auto[0] and x.startswith('v_'):
            acc[0]+=1
            if acc[0]>=auto[0]: acc[0]=0; issue(nxt[0]); nxt[0]+=1
    cnt=[0]
    def vm(s): a(s); cnt[0]+=1; return cnt[0]
    def wait(m): a('s_waitcnt vmcnt(%d)'%min(63,cnt[0]-m))
    def lg(): a('s_waitcnt lgkmcnt(0)')
    def stamp(k,p=0):
        if stamps and (p==pro or k in (1,6)): a('s_memrealtime s[88:89]'); lg(); a('s_mov_b32 s%d, s88'%(90+k))
    def srd(d,b,off,n):
        if off is None: a('s_mov_b32 s%d, s%d'%(d,b)); a('s_mov_b32 s%d, s%d'%(d+1,b+1))
        else: a('s_add_u32 s%d, s%d, %s'%(d,b,off)); a('s_addc_u32 s%d, s%d, 0'%(d+1,b+1))
        a('s_mov_b32 s%d, %s'%(d+2,n)); a('s_mov_b32 s%d, 0x20000'%(d+3))
    def rb(v): a('v_cvt_pk_bf16_f32 v%d, v%d, v%d'%(v,v,v)); a('v_and_b32 v%d, 0xffff0000, v%d'%(v,v))
    def dpp(op,d,s0,s1,ctl,bank=0xf): a('%s_dpp v%d, v%d, v%d %s row_mask:0xf bank_mask:0x%x'%(op,d,s0,s1,ctl,bank))
    Q1='quad_perm:[1,0,3,2]'; Q2='quad_perm:[2,3,0,1]'; HM='row_half_mirror'
    def merge(lv,x,y,t):
        if lv==0: a('v_permlane16_swap_b32 v%d, v%d'%(x,y)); a('v_add_f32 v%d, v%d, v%d'%(x,x,y))
        elif lv==1: dpp('v_add_f32',x,x,x,'row_ror:8',0x3); dpp('v_add_f32',x,y,y,'row_ror:8',0xc)
        elif lv==2: dpp('v_add_f32',x,x,x,HM,0x5); dpp('v_add_f32',x,y,y,HM,0xa)
        else:
            m='s[56:57]' if lv==3 else 's[58:59]'
            a('v_cndmask_b32 v%d, v%d, v%d, %s'%(t,y,x,m)); a('v_cndmask_b32 v%d, v%d, v%d, %s'%(x,x,y,m))
            dpp('v_add_f32',x,t,x,Q2 if lv==3 else Q1)
    def red32(op,x,t):
        for c in ('row_ror:8','row_ror:4','row_ror:2','row_ror:1'): dpp(op,x,x,x,c)
        a('v_mov_b32 v%d, v%d'%(t,x)); a('v_permlane16_swap_b32 v%d, v%d'%(x,t)); a('%s v%d, v%d, v%d'%(op,x,x,t))
    def spin(name,load,rs):
        a('s_mov_b32 s61, 20000')
        a(name+'_c:')
        chk(rs); a('s_cbranch_vccz %s_d'%name)
        a('s_sub_u32 s61, s61, 1'); a('s_cbranch_scc1 %s_d'%name)
        for l in load: a(l)
        a('s_waitcnt vmcnt(0)'); a('s_branch %s_c'%name)
        a(name+'_d:')
    def chk(rs):
        if len(rs)==1: a('v_cmp_eq_u32 vcc, -1, v%d'%rs[0]); return
        a('v_max_u32 v7, v%d, v%d'%(rs[0],rs[1]))
        for k in range(2,len(rs),2): a('v_max3_u32 v7, v7, v%d, v%d'%(rs[k],rs[k+1]))
        a('v_cmp_eq_u32 vcc, -1, v7')
    a('s_cmp_ge_u32 s2, 256'); a('s_cbranch_scc1 L_end')
    a('s_load_dwordx16 s[64:79], s[0:1], 0'); a('s_load_dwordx8 s[80:87], s[0:1], 64')
    if stamps: a('s_memrealtime s[88:89]')
    if pf:
        a('s_getpc_b64 s[98:99]'); a('v_lshlrev_b32 v42, 6, v0'); a('v_min_u32 v42, L_end-%s-64, v42'%KN); vm('global_load_dword v43, v42, s[98:99]')
    a('v_and_b32 v1, 63, v0'); a('v_lshrrev_b32 v3, 6, v0'); a('v_readfirstlane_b32 s52, v3'); a('v_lshlrev_b32 v2, 4, v0')
    a('s_lshr_b32 s3, s2, 3'); a('s_and_b32 s4, s2, 7')
    a('s_lshl_b32 s5, s3, 23'); a('s_lshl_b32 s6, s4, 18'); a('s_add_u32 s5, s5, s6'); a('s_add_u32 s5, s5, %d'%(12288*512))
    a('s_lshr_b32 s53, s2, 6'); a('s_and_b32 s55, s2, 63')
    a('s_mul_i32 s6, s53, %d'%(112*8192)); a('s_lshl_b32 s7, s55, 7'); a('s_add_u32 s6, s6, s7'); a('s_sub_u32 s7, %d, s7'%(112*8192))
    a('s_cmp_ge_u32 s55, 28'); a('s_cselect_b32 s56, 28, 0'); a('s_cselect_b32 s57, 4, 0'); a('s_sub_u32 s56, s55, s56')
    a('s_mul_i32 s58, s53, %d'%(112*3584)); a('s_lshl_b32 s59, s56, 7'); a('s_add_u32 s58, s58, s59'); a('s_sub_u32 s59, %d, s59'%(112*3584))
    a('s_cmp_ge_u32 s55, 56'); a('s_cselect_b32 s59, 0, s59')
    a('v_mul_u32_u24 v4, 896, v3'); a('v_lshl_add_u32 v4, v1, 4, v4')
    a('v_lshrrev_b32 v16, 3, v1'); a('v_and_b32 v19, 7, v1'); a('v_lshl_add_u32 v6, v3, 4, v16')
    a('v_lshlrev_b32 v22, 13, v6'); a('v_lshl_add_u32 v22, v19, 4, v22')
    a('v_mul_u32_u24 v17, 3584, v6'); a('v_lshl_add_u32 v17, v19, 4, v17')
    a('s_mov_b32 s54, 0x10000'); a('s_mov_b32 s61, 28672'); a('s_mov_b32 s60, 0'); a('s_cmp_ge_u32 s55, 28')
    lg()
    if stamps: a('s_mov_b32 s90, s88')
    a('s_cselect_b32 s76, s78, s76'); a('s_cselect_b32 s77, s79, s77')
    srd(36,64,None,3584); srd(24,76,'s58',0 if 'g' in drop else 's59'); srd(16,70,'s6',0 if 'q' in drop else 's7'); srd(8,66,'s5',1<<18); srd(48,86,None,0x400000)
    mx=vm('buffer_load_dwordx4 v[96:99], v4, s[36:39], 0 offen '+xnt)
    vm('buffer_load_dwordx4 v[52:55], v22, s[16:19], 0 offen '+qnt)
    vm('buffer_load_dwordx4 v[56:59], v22, s[16:19], s54 offen '+qnt)
    vm('buffer_load_dwordx4 v[44:47], v17, s[24:27], 0 offen '+wnt)
    mq=vm('buffer_load_dwordx4 v[48:51], v17, s[24:27], s61 offen '+wnt)
    a('s_lshl_b32 s62, s2, 12'); a('s_add_u32 s62, s62, %d'%REC1)
    a('s_lshl_b32 s63, s2, 11'); a('s_add_u32 s63, s63, %d'%REC2)
    a('s_cmp_lg_u32 s52, %d'%(9 if 'c' in drop else 7)); a('s_cbranch_scc1 L_noclr')
    for k in range(4): a('v_mov_b32 v%d, -1'%(60+k))
    a('v_lshlrev_b32 v64, 4, v1')
    for o in (0,1024,2048): a('buffer_store_dwordx4 v[60:63], v64, s[48:51], s62 offen offset:%d sc1'%o)
    for o in (0,1024): a('buffer_store_dwordx4 v[60:63], v64, s[48:51], s63 offen offset:%d sc1'%o)
    if arr==3:
        a('s_cmp_lg_u32 s2, 0'); a('s_cbranch_scc1 L_noclr'); a('v_mov_b32 v65, 0'); a('v_lshlrev_b32 v66, 8, v1'); a('s_mov_b32 s97, %d'%CN)
        a('buffer_store_dword v65, v66, s[48:51], s97 offen sc1')
    a('L_noclr:')
    a('v_mov_b32 v60, -1'); a('v_lshlrev_b32 v61, 2, v1'); a('ds_write_b32 v61, v60 offset:%d'%MX)
    mclr=cnt[0]
    ms={}
    def slot(t): return 128+4*t if t<32 else (24+4*(t-32) if t<40 else 128+4*((t-40)%16))
    def issue(t):
        if t==32: a('s_mov_b32 s60, 0')
        ms[t]=vm('buffer_load_dwordx4 v[%d:%d], v2, s[%d:%d], s60 offen %s'%(slot(t),slot(t)+3,8 if t<32 else 12,11 if t<32 else 15,nt))
        a('s_add_u32 s60, s60, 0x2000')
    if bar0: a('s_barrier')
    for t in range(burst): issue(t)
    srd(12,68,'s5',1<<18); srd(44,84,None,256); srd(40,82,None,3584)
    a('s_mul_i32 s5, s55, %d'%(28*896)); srd(32,80,'s5',0 if 'o' in drop else 28*896)
    a('s_mul_i32 s5, s55, %d'%(64*896)); srd(20,72,'s5',0 if 'o' in drop else 64*896)
    a('s_lshl_b32 s6, s53, 16'); a('s_lshl_b32 s5, s55, 8'); a('s_add_u32 s6, s6, s5')
    a('s_add_u32 s7, s57, s53'); a('s_lshl_b32 s7, s7, 15'); a('s_lshl_b32 s5, s56, 8'); a('s_add_u32 s7, s7, s5'); a('s_add_u32 s7, s7, %d'%GP)
    a('s_mov_b32 s56, 0xcccccccc'); a('s_mov_b32 s57, s56'); a('s_mov_b32 s58, 0xaaaaaaaa'); a('s_mov_b32 s59, s58')
    a('s_mov_b32 s64, 0x05040100'); a('s_mov_b32 s65, 0x07060302'); a('s_mov_b32 s66, 0x3db8aa3b')
    a('s_mul_i32 s5, s53, 224'); a('v_lshl_add_u32 v6, v6, 1, s5'); a('v_lshrrev_b32 v23, 5, v1')
    a('v_and_b32 v5, 31, v1'); a('v_bfrev_b32 v5, v5'); a('v_lshrrev_b32 v5, 27, v5')
    a('v_lshrrev_b32 v20, 4, v1'); a('v_lshlrev_b32 v21, 8, v20'); a('v_lshl_add_u32 v21, v19, 5, v21'); a('v_and_b32 v18, 8, v1'); a('v_lshl_add_u32 v21, v18, 1, v21'); a('v_lshl_add_u32 v21, v3, 10, v21')
    stamp(2,1)
    a('s_cmp_ge_u32 s52, 4'); a('s_cbranch_scc1 L_noln')
    def red64(x,t):
        a('v_mov_b32 v%d, v%d'%(t,x)); a('v_permlane32_swap_b32 v%d, v%d'%(x,t)); a('v_add_f32 v%d, v%d, v%d'%(x,x,t)); red32('v_add_f32',x,t)
    a('v_mov_b32 v60, 0'); a('v_mov_b32 v62, 0'); a('s_mov_b32 exec_hi, 0x00ffffff')
    wait(mx)
    for k in range(4):
        a('v_lshlrev_b32 v%d, 16, v%d'%(24+2*k,96+k)); a('v_and_b32 v%d, 0xffff0000, v%d'%(25+2*k,96+k))
    a('v_pk_add_f32 v[32:33], v[24:25], v[26:27]'); a('v_pk_add_f32 v[34:35], v[28:29], v[30:31]'); a('v_pk_add_f32 v[32:33], v[32:33], v[34:35]')
    a('v_add_f32 v60, v32, v33'); a('s_mov_b32 exec_hi, -1'); red64(60,61)
    a('v_mul_f32 v60, 0xbb124925, v60'); a('v_mov_b32 v61, v60'); a('s_mov_b32 exec_hi, 0x00ffffff')
    for k in range(4): a('v_pk_add_f32 v[%d:%d], v[%d:%d], v[60:61]'%(32+2*k,33+2*k,24+2*k,25+2*k))
    a('v_pk_mul_f32 v[32:33], v[32:33], v[32:33]'); a('v_pk_mul_f32 v[34:35], v[34:35], v[34:35]')
    a('v_pk_fma_f32 v[32:33], v[36:37], v[36:37], v[32:33]'); a('v_pk_fma_f32 v[34:35], v[38:39], v[38:39], v[34:35]'); a('v_pk_add_f32 v[32:33], v[32:33], v[34:35]')
    a('v_add_f32 v62, v32, v33'); a('s_mov_b32 exec_hi, -1'); red64(62,63)
    a('v_mul_f32 v62, 0x3b124925, v62'); rb(62); rb(60)
    a('v_add_f32 v62, 0x3727c5ac, v62'); rb(62); a('v_sqrt_f32 v62, v62'); rb(62); a('v_rcp_f32 v63, v62')
    for k in range(8): a('v_add_f32 v%d, v60, v%d'%(24+k,24+k))
    for k in range(4): a('v_cvt_pk_bf16_f32 v%d, v%d, v%d'%(96+k,24+2*k,25+2*k))
    for k in range(4):
        a('v_lshlrev_b32 v%d, 16, v%d'%(24+2*k,96+k)); a('v_and_b32 v%d, 0xffff0000, v%d'%(25+2*k,96+k))
    for k in range(8): a('v_mul_f32 v%d, v63, v%d'%(32+k,24+k))
    for k in range(8): a('v_fma_f32 v%d, -v%d, v62, v%d'%(24+k,32+k,24+k))
    for k in range(8): a('v_fmac_f32 v%d, v%d, v63'%(32+k,24+k))
    for k in range(4): a('v_cvt_pk_bf16_f32 v%d, v%d, v%d'%(96+k,32+2*k,33+2*k))
    a('s_mov_b32 exec_hi, 0x00ffffff'); a('ds_write_b128 v4, v[96:99] offset:%d'%XN); a('s_mov_b32 exec_hi, -1'); lg()
    a('L_noln:')
    if arr==3:
        a('s_lshl_b32 s5, s2, 3'); a('s_add_u32 s5, s5, s52'); a('s_cmp_lg_u32 s5, 7'); a('s_cbranch_scc1 L_nordy'); wait(mclr)
        a('v_mov_b32 v65, 1'); a('s_mov_b64 exec, 1'); a('buffer_store_dword v65, off, s[44:47], 0 sc1'); a('s_mov_b64 exec, -1'); a('L_nordy:')
    a('s_barrier'); stamp(3,1)
    auto[0]=gap
    for b in range(4):
        a('ds_read_u16 v%d, v6 offset:%d'%(104+b,XN+896*b)); a('ds_read_u16 v%d, v6 offset:%d'%(108+b,XN+896*b+16))
    stamp(4,1); wait(mq); stamp(5,1)
    lg()
    for b in range(4): a('v_lshl_or_b32 v%d, v%d, 16, v%d'%(104+b,108+b,104+b))
    for m,A in enumerate((52,44)):
        for k in range(4):
            a('v_perm_b32 v%d, v%d, v%d, s64'%(96+2*k,A+4+k,A+k)); a('v_perm_b32 v%d, v%d, v%d, s65'%(97+2*k,A+4+k,A+k))
        for b in (0,2,1,3):
            for c in range(8): a('v_dot2_f32_bf16 v%d, v%d, v%d, 0'%(64+8*b+c,96+c,104+b))
        for i in range(16): a('v_permlane32_swap_b32 v%d, v%d'%(64+i,80+i))
        for i in range(0,16,2): a('v_pk_add_f32 v[%d:%d], v[%d:%d], v[%d:%d]'%(64+i,65+i,64+i,65+i,80+i,81+i))
        for i in range(8): a('v_permlane16_swap_b32 v%d, v%d'%(64+i,72+i))
        for i in range(0,8,2): a('v_pk_add_f32 v[%d:%d], v[%d:%d], v[%d:%d]'%(64+i,65+i,64+i,65+i,72+i,73+i))
        for i in range(4): dpp('v_add_f32',112+4*m+i,64+i,64+i,'row_ror:8',0x3)
        for i in range(4): dpp('v_add_f32',112+4*m+i,68+i,68+i,'row_ror:8',0xc)
        a('ds_write_b128 v21, v[%d:%d] offset:%d'%(112+4*m,115+4*m,QP+8192*m))
    auto[0]=0; wait(mclr); lg(); a('s_barrier')
    a('s_cmp_lg_u32 s52, %d'%(9 if 's' in drop else 0)); a('s_cbranch_scc1 L_noq')
    for m in range(2):
        for k in range(7): a('ds_read_b128 v[%d:%d], v2 offset:%d'%(64+28*m+4*k,67+28*m+4*k,QP+8192*m+1024*k))
    a('v_and_b32 v21, 15, v1'); a('v_lshlrev_b32 v21, 4, v21'); a('v_lshl_add_u32 v22, v20, 14, v21'); a('v_lshl_add_u32 v21, v20, 13, v21')
    for m in range(2):
        a('s_waitcnt lgkmcnt(%d)'%(7-7*m)); B=64+28*m
        for x,y in ((0,1),(2,3),(4,5),(0,2),(4,6),(0,4)):
            for e in (0,2): a('v_pk_add_f32 v[%d:%d], v[%d:%d], v[%d:%d]'%(B+4*x+e,B+4*x+e+1,B+4*x+e,B+4*x+e+1,B+4*y+e,B+4*y+e+1))
        if m==0: a('buffer_store_dwordx4 v[64:67], v22, s[48:51], s6 offen sc1')
        else:
            if arr==3: a('buffer_load_dword v18, off, s[44:47], 0 sc1')
            a('s_cmp_ge_u32 s55, 56'); a('s_cbranch_scc1 L_noq'); a('buffer_store_dwordx4 v[92:95], v21, s[48:51], s7 offen sc1')
    a('L_noq:'); mst=cnt[0]; t0=nxt[0]
    stamp(1)
    work={t:[] for t in range(burst,70)}
    st={}
    def W(t,f): work[t].append(f)
    def dep(t): return [d for (x,d) in dsch if t>=x][-1] if dsch else min(d1,depth+max(0,(t-t_up)//slope))
    def arrive():
        a('s_cmp_lg_u32 s52, 0'); a('s_cbranch_scc1 L_ar')
        if shard==0: a('s_lshr_b32 s5, s4, 1')
        else: a('s_and_b32 s5, s3, 3')
        a('s_lshl_b32 s78, s5, 6'); a('s_mov_b32 s79, 1'); a('v_mov_b32 v20, 1'); wait(mst)
        if arr==0: a('s_atomic_add s79, s[84:85], s78')
        elif arr==3:
            a('s_mov_b32 s61, 20000'); a('L_rc:'); a('v_readfirstlane_b32 s97, v18'); a('s_cmp_lg_u32 s97, 0'); a('s_cbranch_scc1 L_rd'); a('s_sub_u32 s61, s61, 1'); a('s_cbranch_scc1 L_rd')
            a('buffer_load_dword v18, off, s[44:47], 0 sc1'); a('s_waitcnt vmcnt(0)'); a('s_branch L_rc'); a('L_rd:')
            a('s_and_b32 s78, s2, %d'%(nsh-1)); a('s_lshl_b32 s78, s78, 8'); a('s_add_u32 s78, s78, %d'%CN); a('s_atomic_add s79, s[86:87], s78')
        else:
            a('s_mov_b64 exec, 1')
            if arr==1: a('buffer_atomic_add v20, off, s[44:47], s78 sc1')
            else: a('buffer_store_byte v20, off, s[44:47], s2 sc1')
            a('s_mov_b64 exec, -1')
        a('L_ar:')
    if 'a' not in drop: W(t0+t_ar,arrive)
    PL='buffer_load_dword v21, v22, s[%s], 0 offen sc1'%('48:51' if arr==3 else '44:47')
    def poll1():
        a('s_cmp_lg_u32 s52, %d'%wg_); a('s_cbranch_scc1 L_p1')
        if arr==2: a('v_lshlrev_b32 v22, 2, v1')
        elif arr==3: a('v_and_b32 v22, %d, v1'%(nsh-1)); a('v_lshlrev_b32 v22, 8, v22'); a('v_add_u32 v22, %d, v22'%CN)
        else: a('v_and_b32 v22, 3, v1'); a('v_lshlrev_b32 v22, 6, v22')
        a(PL); a('L_p1:'); st['p']=cnt[0]
    def poll2():
        a('s_cmp_lg_u32 s52, %d'%wg_); a('s_cbranch_scc1 L_p2'); wait(st['p'])
        a('s_mov_b32 s61, 20000')
        if 'p' in drop: a('s_branch L_p2d')
        a('L_p2c:'); a('v_cmp_gt_u32 vcc, %s, v21'%('0x01010101' if arr==2 else str(256//nsh) if arr==3 else '64')); a('s_cbranch_vccz L_p2d')
        a('s_sub_u32 s61, s61, 1'); a('s_cbranch_scc1 L_p2d'); a(PL); a('s_waitcnt vmcnt(0)'); a('s_branch L_p2c')
        a('L_p2d:'); a('s_lshl_b32 s5, s3, 11'); a('v_lshlrev_b32 v22, 4, v1')
        for k in range(4):
            for h in range(2): a('buffer_load_dwordx4 v[%d:%d], v22, s[48:51], s5 offen offset:%d sc1'%(64+8*k+4*h,67+8*k+4*h,1024*h))
            a('s_add_u32 s5, s5, 0x10000')
        a('s_lshl_b32 s5, s53, 13'); a('s_mul_i32 s7, s55, 112'); a('s_add_u32 s5, s5, s7'); a('s_add_u32 s5, s5, %d'%GP)
        a('v_min_u32 v21, 6, v16'); a('v_lshlrev_b32 v21, 4, v21'); a('v_lshl_add_u32 v21, v19, 15, v21')
        a('buffer_load_dwordx4 v[8:11], v21, s[48:51], s5 offen sc1'); a('L_p2:'); st['p']=cnt[0]
    def poll3():
        a('s_cmp_lg_u32 s52, %d'%wg_); a('s_cbranch_scc1 L_p3'); wait(st['p'])
        for x,y in ((0,1),(2,3),(0,2)):
            for e in (0,2,4,6): a('v_pk_add_f32 v[%d:%d], v[%d:%d], v[%d:%d]'%(64+8*x+e,65+8*x+e,64+8*x+e,65+8*x+e,64+8*y+e,65+8*y+e))
        for e in range(4): a('v_cvt_pk_bf16_f32 v%d, v%d, v%d'%(64+e,64+2*e,65+2*e))
        a('v_lshlrev_b32 v61, 3, v1'); a('ds_write_b64 v61, v[64:65] offset:%d'%QB); a('ds_write_b64 v61, v[66:67] offset:%d'%(QB+512))
        a('ds_write_b128 v22, v[8:11] offset:%d'%GU); a('v_mov_b32 v61, 0'); a('ds_write_b32 v61, v61 offset:%d'%(MX+128)); a('L_p3:')
    def poll4():
        a('v_and_b32 v60, 31, v1'); a('v_lshlrev_b32 v60, 4, v60'); a('v_mov_b32 v61, 0'); a('s_mov_b32 s61, 100000')
        a('L_p4:'); a('ds_read_b32 v7, v61 offset:%d'%(MX+128))
        a('ds_read_b128 v[8:11], v60 offset:%d'%QB); a('ds_read_b128 v[12:15], v60 offset:%d'%(QB+512)); lg()
        a('v_cmp_eq_u32 vcc, -1, v7'); a('s_cbranch_vccz L_p4d'); a('s_sub_u32 s61, s61, 1'); a('s_cbranch_scc0 L_p4'); a('L_p4d:'); stamp(2)
    st['p']=0
    if 'p' not in drop: W(t_poll,poll1)
    if 'h' not in drop: W(t_poll+4,poll2)
    W(t_poll+8,poll3); tq=t_poll+8+t_q; W(tq,poll4)
    stack=[[],[]]; pool=list(range(64,96))
    def kpair(i):
        def f():
            wait(ms[i+1])
            r=[[pool.pop(0),pool.pop(0)] for h in range(2)]
            for k in range(4):
                for e in range(2):
                    for h in range(2):
                        a('v_dot2_f32_bf16 v%d, v%d, v%d, %s'%(r[h][e],slot(i+e)+k,8+4*h+k,'0' if k==0 else 'v%d'%r[h][e]))
            for h in range(2):
                merge(0,r[h][0],r[h][1],60); pool.append(r[h][1]); stack[h].append((1,r[h][0]))
            while len(stack[0])>1 and stack[0][-1][0]==stack[0][-2][0]:
                for h in range(2):
                    lv,y=stack[h].pop(); _,x=stack[h].pop(); merge(lv,x,y,60+h); pool.append(y); stack[h].append((lv+1,x))
        return f
    t=tq; n=0
    for i in range(0,32,2):
        while i+1>t-dep(t) or n>=kpt: t+=1; n=0
        W(t,kpair(i)); n+=1
        if i<16: assert t<40+i
    tk=t
    def soft():
        r0=stack[0][0][1]; r1=stack[1][0][1]
        a('v_cvt_pk_bf16_f32 v60, v%d, v%d'%(r0,r1)); a('v_lshlrev_b32 v8, 16, v60'); a('v_and_b32 v9, 0xffff0000, v60')
        a('v_mov_b32 v10, v8'); a('v_mov_b32 v11, v9'); a('v_permlane32_swap_b32 v10, v11'); a('v_max_f32 v10, v10, v11'); red32('v_max_f32',10,11)
        a('v_readlane_b32 s76, v10, 0'); a('v_readlane_b32 s77, v10, 32')
        for h in range(2):
            a('v_subrev_f32 v%d, s%d, v%d'%(8+h,76+h,8+h)); a('v_mul_f32 v%d, s66, v%d'%(8+h,8+h)); a('v_exp_f32 v%d, v%d'%(8+h,8+h))
        a('v_cvt_pk_bf16_f32 v60, v8, v9')
        a('v_lshlrev_b32 v13, 8, v3'); a('v_lshl_add_u32 v13, v23, 7, v13'); a('v_lshl_add_u32 v14, v5, 1, v13')
        a('ds_write_b16 v14, v60 offset:%d'%PP); a('ds_write_b16_d16_hi v14, v60 offset:%d'%(PP+64))
        for k in range(8): a('ds_read_b128 v[%d:%d], v13 offset:%d'%(96+4*k,99+4*k,PP+16*k))
        a('v_permlane32_swap_b32 v8, v9'); a('v_add_f32 v11, v8, v9'); red32('v_add_f32',11,9)
        a('v_lshlrev_b32 v12, 3, v3'); a('v_lshl_add_u32 v12, v23, 6, v12'); a('ds_write_b64 v12, v[10:11] offset:%d'%MX); lg(); stamp(3)
    W(tk,soft)
    def vpair(i):
        def f():
            wait(ms[i+1]); j=(i-32)//2; A=slot(i); B=slot(i+1)
            for k in range(4):
                a('v_perm_b32 v%d, v%d, v%d, s64'%(80+2*k,B+k,A+k)); a('v_perm_b32 v%d, v%d, v%d, s65'%(81+2*k,B+k,A+k))
            for d in range(8):
                for h in range(2): a('v_dot2_f32_bf16 v%d, v%d, v%d, %s'%(64+8*h+d,80+d,96+16*h+j,'0' if j==0 else 'v%d'%(64+8*h+d)))
        return f
    for i in range(32,64,2):
        t=i+1
        while t<64 and t-dep(t)<i+1: t+=1
        t=max(tk+(i-32)//(2*vpt),t); assert t<i+16 or i+16>63; W(t,vpair(i))
        if i==38: tv7=t
    def mlx(n,pub):
        def f():
            if pub: a('s_cmp_lg_u32 s52, %d'%wm_); a('s_cbranch_scc1 L_ml')
            a('v_lshlrev_b32 v13, 3, v19'); a('v_lshl_add_u32 v13, v23, 6, v13'); a('s_mov_b32 s61, 100000')
            a(n+':'); a('ds_read_b64 v[92:93], v13 offset:%d'%MX); lg()
            a('v_cmp_eq_u32 vcc, -1, v93'); a('s_cbranch_vccz %sd'%n); a('s_sub_u32 s61, s61, 1'); a('s_cbranch_scc0 '+n); a(n+'d:')
            a('v_mov_b32 v88, v92')
            for c in (Q1,Q2,HM): dpp('v_max_f32',88,88,88,c)
            if not pub:
                a('v_sub_f32 v90, v10, v88'); a('v_mul_f32 v90, s66, v90'); a('v_exp_f32 v90, v90'); a('v_mov_b32 v91, v90'); return
            a('v_sub_f32 v92, v92, v88'); a('v_mul_f32 v92, s66, v92'); a('v_exp_f32 v92, v92'); a('v_mul_f32 v89, v92, v93')
            for c in (Q1,Q2,HM): dpp('v_add_f32',89,89,89,c)
            a('v_lshlrev_b32 v13, 3, v23')
            a('s_mov_b32 exec_lo, 1'); a('s_mov_b32 exec_hi, 1'); a('buffer_store_dwordx2 v[88:89], v13, s[48:51], s62 offen offset:2048 sc1'); a('s_mov_b64 exec, -1'); a('L_ml:')
        return f
    W(tk+t_m,mlx('L_m1',1)); W(63,mlx('L_m2',0))
    t_wd=max(t_wd,tk+1); t_wo=max(t_wo,t_wd+1)
    def wd_issue():
        a('v_mul_u32_u24 v56, 3584, v3'); a('v_lshlrev_b32 v57, 4, v1'); a('v_cmp_gt_u32 vcc, 56, v1'); a('v_mov_b32 v58, 0x40000000'); a('v_cndmask_b32 v57, v58, v57, vcc')
        a('v_lshl_add_u32 v58, v56, 1, v57'); a('v_add_u32 v59, 3584, v58'); a('v_add_u32 v57, v56, v57')
    W(t_wd,wd_issue)
    def wd_i(r):
        def f(): st['wd']=vm('buffer_load_dwordx4 v[%d:%d], v57, s[32:35], 0 offen offset:%d %s'%(232+4*r,235+4*r,896*r,ont))
        return f
    for r in range(4): W(t_wd+r*wsp,wd_i(r))
    t_wd+=3*wsp; t_wo=max(t_wo,t_wd+1)
    def wd_comp():
        a('v_lshlrev_b32 v45, 4, v19'); a('v_lshl_add_u32 v45, v3, 7, v45')
        a('ds_read_b128 v[24:27], v45 offset:%d'%GU); lg()
        for c in (Q1,Q2):
            for d in range(4): dpp('v_add_f32',24+d,24+d,24+d,c)
        for d in range(4): a('v_mov_b32_dpp v%d, v%d row_half_mirror row_mask:0xf bank_mask:0xf'%(28+d,24+d))
        for d in range(8): rb(24+d)
        for d in range(4): a('v_mul_f32 v%d, 0xbfb8aa3b, v%d'%(32+d,24+d))
        for d in range(4): a('v_exp_f32 v%d, v%d'%(32+d,32+d))
        for d in range(4): a('v_add_f32 v%d, 1.0, v%d'%(32+d,32+d))
        for d in range(4): a('v_rcp_f32 v%d, v%d'%(32+d,32+d))
        for d in range(4): a('v_mul_f32 v%d, v%d, v%d'%(24+d,24+d,32+d))
        for d in range(4): rb(24+d)
        for d in range(4): a('v_mul_f32 v%d, v%d, v%d'%(24+d,24+d,28+d))
        a('v_cvt_pk_bf16_f32 v24, v24, v25'); a('v_cvt_pk_bf16_f32 v25, v26, v27')
        a('v_readlane_b32 s76, v24, 0'); a('v_readlane_b32 s77, v25, 0')
        wait(st['wd'])
        for p in range(2):
            for k in range(4):
                A=232+8*p+k; a('v_perm_b32 v%d, v%d, v%d, s64'%(28+2*k,A+4,A)); a('v_perm_b32 v%d, v%d, v%d, s65'%(29+2*k,A+4,A))
            for d in range(8): a('v_dot2_f32_bf16 v%d, v%d, s%d, %s'%(48+d,28+d,76+p,'0' if p==0 else 'v%d'%(48+d)))
    twc=max(t_wd+dep(t_wd)+1,tv7+1); W(twc,wd_comp); assert twc<t_ml and tk+t_m<t_ml
    def wo_issue(p):
        def f():
            for r in (p,): st['wo']=vm('buffer_load_dwordx4 v[%d:%d], v%d, s[20:23], 0 offen offset:%d %s'%(200+4*r,203+4*r,58+(r>>2),896*(r&3),ont))
        return f
    def wo_perm():
        wait(st['wo'])
        for p in range(4):
            for k in range(4):
                A=200+8*p+k; a('v_perm_b32 v%d, v%d, v%d, s64'%(192+8*p+2*k,A+4,A)); a('v_perm_b32 v%d, v%d, v%d, s65'%(193+8*p+2*k,A+4,A))
    late = t_wo>=56
    for p in range(8): W(min(63,t_wo+(p if wsp else p&~1)),wo_issue(p))
    if not late: W(min(64,t_wo+7+dep(t_wo+7)),wo_perm)
    ML='buffer_load_dwordx2 v[24:25], v26, s[48:51], s67 offen offset:2048 sc1'
    def ml1():
        a('s_lshl_b32 s67, s3, 15'); a('s_add_u32 s67, s67, %d'%REC1); a('s_lshr_b32 s5, s4, 2'); a('s_lshl_b32 s5, s5, 3')
        a('v_lshl_add_u32 v26, v19, 12, s5'); st['ml']=vm(ML) if 'm' not in drop else 0
        a('s_lshl_b32 s5, s4, 8'); a('v_lshlrev_b32 v27, 12, v19'); a('v_lshl_add_u32 v27, v16, 2, v27'); a('v_lshl_add_u32 v27, v3, 5, v27'); a('v_add_u32 v27, s5, v27')
        a('v_cmp_eq_u32 vcc, s4, v19'); a('v_mov_b32 v36, 0x40000000'); a('v_cndmask_b32 v27, v27, v36, vcc')
        a('v_mul_u32_u24 v37, %d, v19'%WS); a('v_lshrrev_b32 v36, 2, v16'); a('v_mul_u32_u24 v36, %d, v36'%DH); a('v_add_u32 v37, v37, v36')
        a('v_and_b32 v36, 3, v16'); a('v_lshl_add_u32 v37, v36, 2, v37'); a('v_lshl_add_u32 v37, v3, 4, v37'); a('s_lshl_b32 s5, s4, 7'); a('v_add_u32 v37, s5, v37')
        a('v_mul_u32_u24 v28, %d, v3'%WS); a('v_lshl_add_u32 v28, v1, 4, v28')
        a('v_and_b32 v29, 3, v1'); a('v_mul_u32_u24 v29, %d, v29'%(2*WS)); a('v_bfe_u32 v30, v1, 2, 1'); a('v_mul_u32_u24 v30, %d, v30'%DH); a('v_add_u32 v29, v29, v30')
        a('v_lshl_add_u32 v29, v16, 4, v29'); a('v_lshl_add_u32 v29, v3, 7, v29')
        a('v_lshlrev_b32 v30, 2, v0')
        a('s_lshl_b32 s68, s53, 17'); a('s_add_u32 s68, s68, %d'%REC2); a('s_lshl_b32 s5, s55, 7'); a('s_add_u32 s68, s68, s5')
        a('v_lshlrev_b32 v31, 11, v19'); a('v_lshl_add_u32 v31, v16, 4, v31')
        a('s_mul_i32 s5, s53, 896'); a('s_lshl_b32 s7, s55, 6'); a('s_add_u32 s5, s5, s7'); a('v_lshl_add_u32 v32, v16, 3, s5')
        for k in range(1,8): a('s_add_u32 s%d, s68, %d'%(68+k,16384*k))
        vm('buffer_load_dwordx2 v[34:35], v32, s[36:39], 0 offen')
    def ml2():
        wait(st['ml']); spin('L_mls',[ML],[24,25])
        a('v_mov_b32 v36, v24')
        for c in (Q1,Q2,HM): dpp('v_max_f32',36,36,36,c)
        a('v_sub_f32 v24, v24, v36'); a('v_mul_f32 v24, s66, v24'); a('v_exp_f32 v24, v24'); a('v_mul_f32 v25, v24, v25')
        for c in (Q1,Q2,HM): dpp('v_add_f32',25,25,25,c)
        a('v_rcp_f32 v25, v25'); a('v_mul_f32 v33, v24, v25'); a('v_readlane_b32 s76, v33, s4')
    W(t_ml,ml1)
    for t in range(t0,65):
        if t<64:
            if t-dep(t)>=0: wait(ms[t-dep(t)])
            issue(t)
        if t in prio:
            a('s_cmp_lt_u32 s52, 4'); a('s_cbranch_scc1 L_pr%d'%t); a('s_setprio %d'%prio[t]); a('L_pr%d:'%t)
        for f in work[t]: f()
        if pro==2 and t in tst: stamp(2+tst.index(t),2)
    for t in range(65,70): assert not work[t]
    stamp(4)
    OL='buffer_load_dword v38, v27, s[48:51], s67 offen sc1'
    def xred(base,src,soff,lab):
        a('ds_write_b128 v28, v[%d:%d] offset:%d'%(src,src+3,base)); a('ds_write_b128 v28, v[%d:%d] offset:%d'%(src+4,src+7,base+DH))
        if not lab: st['ol']=vm(OL)
        lg(); a('s_barrier')
        if lab: a('s_cmp_eq_u32 s52, 7'); a('s_cbranch_scc1 '+lab)
        a('ds_read_b128 v[80:83], v29 offset:%d'%base); a('ds_read_b128 v[84:87], v29 offset:%d'%(base+WS))
        if lab: lg()
        else: a('ds_read_b32 v39, v37 offset:%d'%base); a('s_waitcnt lgkmcnt(1)')
        a('v_pk_add_f32 v[80:81], v[80:81], v[84:85]'); a('v_pk_add_f32 v[82:83], v[82:83], v[86:87]')
        for c in (Q1,Q2):
            for d in range(4): dpp('v_add_f32',80+d,80+d,80+d,c)
        a('s_mov_b32 exec_lo, 0x11111111'); a('s_mov_b32 exec_hi, 0x11111111')
        vm('buffer_store_dwordx4 v[80:83], v30, s[48:51], %s offen sc1'%soff)
    for d in range(8): a('v_permlane32_swap_b32 v%d, v%d'%(64+d,72+d))
    for d in range(0,8,2): a('v_pk_add_f32 v[%d:%d], v[%d:%d], v[%d:%d]'%(64+d,65+d,64+d,65+d,72+d,73+d))
    for d in range(0,8,2): a('v_pk_mul_f32 v[%d:%d], v[%d:%d], v[90:91]'%(64+d,65+d,64+d,65+d))
    xred(OR,64,'s62',None)
    a('s_mov_b64 exec, -1')
    if late: wo_perm()
    ml2(); lg(); a('v_mul_f32 v24, s76, v39')
    wait(st['ol']); spin('L_os',[OL],[38])
    stamp(5)
    a('v_fmac_f32 v24, v38, v33')
    for c in (Q1,Q2,HM): dpp('v_add_f32',24,24,24,c)
    a('v_mov_b32_dpp v25, v24 row_ror:8 row_mask:0xf bank_mask:0xf'); a('v_cvt_pk_bf16_f32 v24, v24, v25')
    for p in range(4): a('v_readlane_b32 s%d, v24, %d'%(76+p,16*p))
    for p in range(4):
        for d in range(8): a('v_dot2_f32_bf16 v%d, v%d, s%d, v%d'%(48+d,192+8*p+d,76+p,48+d))
    xred(OP,48,'s63','L_fin')
    a('s_branch L_done')
    a('L_fin:')
    a('s_cmp_ge_u32 s55, 14'); a('s_cbranch_scc1 L_done')
    FL=['buffer_load_dwordx4 v[%d:%d], v31, s[48:51], s%d offen sc1'%(96+4*k,99+4*k,68+k) for k in range(8)]
    for l in FL: a(l)
    a('s_waitcnt vmcnt(0)'); spin('L_fs',FL,list(range(96,128)))
    for s in (16,8,4):
        for k in range(0,s,2): a('v_pk_add_f32 v[%d:%d], v[%d:%d], v[%d:%d]'%(96+k,97+k,96+k,97+k,96+s+k,97+s+k))
    a('v_lshlrev_b32 v36, 16, v34'); a('v_and_b32 v37, 0xffff0000, v34'); a('v_lshlrev_b32 v38, 16, v35'); a('v_and_b32 v39, 0xffff0000, v35')
    for c in (Q1,Q2,HM):
        for d in range(4): dpp('v_add_f32',96+d,96+d,96+d,c)
    a('v_pk_add_f32 v[96:97], v[96:97], v[36:37]'); a('v_pk_add_f32 v[98:99], v[98:99], v[38:39]')
    a('v_cvt_pk_bf16_f32 v96, v96, v97'); a('v_cvt_pk_bf16_f32 v97, v98, v99')
    a('s_mov_b32 exec_lo, 0x01010101'); a('s_mov_b32 exec_hi, 0x01010101')
    a('buffer_store_dwordx2 v[96:97], v32, s[40:43], 0 offen')
    a('L_done:')
    if stamps:
        stamp(6); a('s_getreg_b32 s97, hwreg(HW_REG_XCC_ID)'); srd(8,86,'0x20000000',1<<20)
        a('s_lshl_b32 s5, s2, 3'); a('s_add_u32 s5, s5, s52'); a('s_lshl_b32 s5, s5, 5'); a('s_mov_b64 exec, 1')
        for k in range(8): a('v_mov_b32 v%d, s%d'%(8+k,90+k))
        a('buffer_store_dwordx4 v[8:11], off, s[8:11], s5'); a('buffer_store_dwordx4 v[12:15], off, s[8:11], s5 offset:16')
    if hold and gmin:
        a('s_mov_b64 exec, -1'); a('buffer_load_dword v20, off, s[44:47], 0 offset:128 sc1'); a('s_waitcnt vmcnt(0)'); a('v_readfirstlane_b32 s90, v20'); a('s_not_b32 s90, s90')
    if hold:
        a('L_hold:'); a('s_memrealtime s[88:89]'); lg(); a('s_sub_u32 s5, s88, s90'); a('s_cmp_lt_u32 s5, %d'%hold); a('s_cbranch_scc1 L_hold')
    if stamps==2:
        a('s_cmp_lg_u32 s52, 7'); a('s_cbranch_scc1 L_end'); a('s_not_b32 s97, s90'); a('s_mov_b64 exec, 0xff')
        for k in range(8): a('v_writelane_b32 v20, s%d, %d'%(90+k,k))
        a('v_lshlrev_b32 v21, 2, v1'); a('buffer_atomic_umax v20, v21, s[44:47], 0 offen offset:32 sc1')
    a('L_end:')
    ref=open('parallel_sum__sliding_block_cached__swiglu_ffn__decode.s.ref').read().split('\n')
    i0=[i for i,l in enumerate(ref) if l.startswith(KN+':')][0]; i1=[i for i,l in enumerate(ref) if l.startswith('s_endpgm')][0]
    hdr=['; @launch grid=(256,1,1) block=(512,1,1) lds=%d'%LDS if l.startswith('; @launch') else l for l in ref[:i0+1]]
    body=[l if l.endswith(':') else '    '+l for l in pad(L)]
    return '\n'.join(hdr+body+ref[i1:])
if __name__=='__main__':
    from asm import build
    name=sys.argv[1]; kw=eval('dict(%s)'%(sys.argv[2] if len(sys.argv)>2 else ''))
    open(name+'.s','w').write(gen(**kw)); build(name+'.s',name+'.co')
```

```python
import sys
sys.path.insert(0,'exp'); sys.path.insert(0,'k')
from hz import pad
KN="parallel_sum__sliding_block_cached__swiglu_ffn__decode_kernel"
XN=0; QP=12288; QB=6144; GU=7168; MX=9216; LS=9280; PP=9472; OR=12288; WS=2320; DH=1152; OP=OR+8*WS; LDS=OP+8*WS
GP=0x40000; CN=0x80000; REC1=0x100000; REC2=0x200000
def gen(depth=4, burst=5, nt='nt', wnt='nt', stamps=False, t_gu=8, t_poll=20, t_wd=34, t_wo=40, t_ml=58, pf=1, gap=50, t_g=5, cx=0, asym=(8,56,1,1), wg_=1, wm_=5, dsch=None, wsp=0, vpt=3, prio={}, arr=0, nsh=32, shard=0, t_q=4, t_m=3, tst=(12,20,25,29), gmin=0, hold=0, d1=8, t_up=56, slope=1, kpt=2, ont='', drop='', bar0=1, pro=0, xnt='', qnt='nt', t_ar=2):
    L=[]; auto=[0]; acc=[0]; nxt=[burst]
    def a(x):
        L.append(x)
        if auto[0] and x.startswith('v_'):
            acc[0]+=1
            if acc[0]>=auto[0]: acc[0]=0; issue(nxt[0]); nxt[0]+=1
    cnt=[0]
    def vm(s): a(s); cnt[0]+=1; return cnt[0]
    def wait(m): a('s_waitcnt vmcnt(%d)'%min(63,cnt[0]-m))
    def lg(): a('s_waitcnt lgkmcnt(0)')
    def stamp(k,p=0):
        if stamps and (p==pro or k in (1,6)): a('s_memrealtime s[88:89]'); lg(); a('s_mov_b32 s%d, s88'%(90+k if k<6 else 100))
    def srd(d,b,off,n):
        if off is None: a('s_mov_b32 s%d, s%d'%(d,b)); a('s_mov_b32 s%d, s%d'%(d+1,b+1))
        else: a('s_add_u32 s%d, s%d, %s'%(d,b,off)); a('s_addc_u32 s%d, s%d, 0'%(d+1,b+1))
        a('s_mov_b32 s%d, %s'%(d+2,n)); a('s_mov_b32 s%d, 0x20000'%(d+3))
    def rb(v): a('v_cvt_pk_bf16_f32 v%d, v%d, v%d'%(v,v,v)); a('v_and_b32 v%d, 0xffff0000, v%d'%(v,v))
    def dpp(op,d,s0,s1,ctl,bank=0xf): a('%s_dpp v%d, v%d, v%d %s row_mask:0xf bank_mask:0x%x'%(op,d,s0,s1,ctl,bank))
    Q1='quad_perm:[1,0,3,2]'; Q2='quad_perm:[2,3,0,1]'; HM='row_half_mirror'
    def merge(lv,x,y,t):
        if lv==0: a('v_permlane16_swap_b32 v%d, v%d'%(x,y)); a('v_add_f32 v%d, v%d, v%d'%(x,x,y))
        elif lv==1: dpp('v_add_f32',x,x,x,'row_ror:8',0x3); dpp('v_add_f32',x,y,y,'row_ror:8',0xc)
        elif lv==2: dpp('v_add_f32',x,x,x,HM,0x5); dpp('v_add_f32',x,y,y,HM,0xa)
        else:
            m='s[56:57]' if lv==3 else 's[58:59]'
            a('v_cndmask_b32 v%d, v%d, v%d, %s'%(t,y,x,m)); a('v_cndmask_b32 v%d, v%d, v%d, %s'%(x,x,y,m))
            dpp('v_add_f32',x,t,x,Q2 if lv==3 else Q1)
    def red32(op,x,t):
        for c in ('row_ror:8','row_ror:4','row_ror:2','row_ror:1'): dpp(op,x,x,x,c)
        a('v_mov_b32 v%d, v%d'%(t,x)); a('v_permlane16_swap_b32 v%d, v%d'%(x,t)); a('%s v%d, v%d, v%d'%(op,x,x,t))
    def spin(name,load,rs):
        a('s_mov_b32 s61, 20000')
        a(name+'_c:')
        chk(rs); a('s_cbranch_vccz %s_d'%name)
        a('s_sub_u32 s61, s61, 1'); a('s_cbranch_scc1 %s_d'%name)
        for l in load: a(l)
        a('s_waitcnt vmcnt(0)'); a('s_branch %s_c'%name)
        a(name+'_d:')
    def chk(rs):
        if isinstance(rs,str): a(rs); return
        for i,r in enumerate(rs):
            k=i&3
            if i<4: a('v_xor_b32 v%d, s%d, v%d'%(60+k,44+k,r))
            else: a('v_bitop3_b32 v%d, v%d, v%d, s%d bitop3:0xf6'%(60+k,60+k,r,44+k))
        a('v_or3_b32 v60, v60, v61, v62'); a('v_or_b32 v60, v60, v63'); a('v_and_b32 v60, 0xff, v60'); a('v_cmp_ne_u32 vcc, 0, v60')
    def tag(r):
        for k in range(4): a('v_perm_b32 v%d, v%d, v4, s%d'%(r+k,r+k,28+k))
    a('s_cmp_ge_u32 s2, 256'); a('s_cbranch_scc1 L_end')
    a('s_load_dwordx16 s[64:79], s[0:1], 0'); a('s_load_dwordx8 s[80:87], s[0:1], 64')
    if stamps: a('s_memrealtime s[88:89]')
    if pf:
        a('s_getpc_b64 s[98:99]'); a('v_lshlrev_b32 v42, 6, v0'); a('v_min_u32 v42, L_end-%s-64, v42'%KN); vm('global_load_dword v43, v42, s[98:99]')
    a('v_and_b32 v1, 63, v0'); a('v_lshrrev_b32 v3, 6, v0'); a('v_readfirstlane_b32 s52, v3'); a('v_lshlrev_b32 v2, 4, v0')
    a('s_lshr_b32 s3, s2, 3'); a('s_and_b32 s4, s2, 7')
    a('s_lshl_b32 s5, s3, 23'); a('s_xor_b32 s6, s4, %d'%cx); a('s_lshl_b32 s6, s6, 18'); a('s_add_u32 s5, s5, s6'); a('s_add_u32 s5, s5, %d'%(12288*512))
    a('s_lshr_b32 s53, s2, 6'); a('s_and_b32 s55, s2, 63')
    a('s_mul_i32 s6, s53, %d'%(112*8192)); a('s_lshl_b32 s7, s55, 7'); a('s_add_u32 s6, s6, s7'); a('s_sub_u32 s7, %d, s7'%(112*8192))
    a('s_cmp_ge_u32 s55, 28'); a('s_cselect_b32 s56, 28, 0'); a('s_cselect_b32 s57, 4, 0'); a('s_sub_u32 s56, s55, s56')
    a('s_mul_i32 s58, s53, %d'%(112*3584)); a('s_lshl_b32 s59, s56, 7'); a('s_add_u32 s58, s58, s59'); a('s_sub_u32 s59, %d, s59'%(112*3584))
    a('s_cmp_ge_u32 s55, 56'); a('s_cselect_b32 s59, 0, s59')
    a('v_mul_u32_u24 v4, 896, v3'); a('v_lshl_add_u32 v4, v1, 4, v4')
    a('v_lshrrev_b32 v16, 3, v1'); a('v_and_b32 v19, 7, v1'); a('v_lshl_add_u32 v6, v3, 4, v16')
    a('v_lshlrev_b32 v22, 13, v6'); a('v_lshl_add_u32 v22, v19, 4, v22')
    a('v_mul_u32_u24 v17, 3584, v6'); a('v_lshl_add_u32 v17, v19, 4, v17')
    a('s_mov_b32 s54, 0x10000'); a('s_mov_b32 s61, 28672'); a('s_mov_b32 s60, 0'); a('s_cmp_ge_u32 s55, 28')
    lg()
    if stamps: a('s_mov_b32 s90, s88')
    a('s_cselect_b32 s76, s78, s76'); a('s_cselect_b32 s77, s79, s77')
    a('s_load_dword s101, s[86:87], %d'%CN)
    srd(36,64,None,3584); srd(24,76,'s58',0 if 'g' in drop else 's59'); srd(16,70,'s6',0 if 'q' in drop else 's7'); srd(8,66,'s5',1<<18); srd(48,86,None,0x400000)
    mx=vm('buffer_load_dwordx4 v[96:99], v4, s[36:39], 0 offen '+xnt)
    vm('buffer_load_dwordx4 v[52:55], v22, s[16:19], 0 offen '+qnt)
    vm('buffer_load_dwordx4 v[56:59], v22, s[16:19], s54 offen '+qnt)
    vm('buffer_load_dwordx4 v[44:47], v17, s[24:27], 0 offen '+wnt)
    mq=vm('buffer_load_dwordx4 v[48:51], v17, s[24:27], s61 offen '+wnt)
    a('s_lshl_b32 s62, s2, 12'); a('s_add_u32 s62, s62, %d'%REC1)
    a('s_lshl_b32 s63, s2, 11'); a('s_add_u32 s63, s63, %d'%REC2)
    a('v_mov_b32 v60, -1'); a('v_lshlrev_b32 v61, 2, v1'); a('ds_write_b32 v61, v60 offset:%d'%MX)
    mclr=cnt[0]
    ms={}
    def slot(t): return 128+4*t if t<32 else (24+4*(t-32) if t<40 else 128+4*((t-40)%16))
    def issue(t):
        if t==32: a('s_mov_b32 s60, 0')
        ms[t]=vm('buffer_load_dwordx4 v[%d:%d], v2, s[%d:%d], s60 offen %s'%(slot(t),slot(t)+3,8 if t<32 else 12,11 if t<32 else 15,nt))
        a('s_add_u32 s60, s60, 0x2000')
    if bar0: a('s_barrier')
    for t in range(burst): issue(t)
    srd(12,68,'s5',1<<18); srd(40,82,None,3584)
    a('s_mul_i32 s5, s55, %d'%(28*896)); srd(32,80,'s5',0 if 'o' in drop else 28*896)
    a('s_mul_i32 s5, s55, %d'%(64*896)); srd(20,72,'s5',0 if 'o' in drop else 64*896)
    a('s_lshl_b32 s6, s53, 16'); a('s_lshl_b32 s5, s55, 8'); a('s_add_u32 s6, s6, s5')
    a('s_add_u32 s7, s57, s53'); a('s_lshl_b32 s7, s7, 15'); a('s_lshl_b32 s5, s56, 8'); a('s_add_u32 s7, s7, s5'); a('s_add_u32 s7, s7, %d'%GP)
    a('s_mov_b32 s56, 0xcccccccc'); a('s_mov_b32 s57, s56'); a('s_mov_b32 s58, 0xaaaaaaaa'); a('s_mov_b32 s59, s58')
    a('s_mov_b32 s64, 0x05040100'); a('s_mov_b32 s65, 0x07060302'); a('s_mov_b32 s66, 0x3db8aa3b')
    a('s_getreg_b32 s96, hwreg(HW_REG_XCC_ID)'); a('s_and_b32 s96, s96, 1')
    a('s_mul_i32 s5, s53, 224'); a('v_lshl_add_u32 v6, v6, 1, s5'); a('v_lshrrev_b32 v23, 5, v1')
    a('v_and_b32 v5, 31, v1'); a('v_bfrev_b32 v5, v5'); a('v_lshrrev_b32 v5, 27, v5')
    a('v_lshrrev_b32 v20, 4, v1'); a('v_lshlrev_b32 v21, 8, v20'); a('v_lshl_add_u32 v21, v19, 5, v21'); a('v_and_b32 v18, 8, v1'); a('v_lshl_add_u32 v21, v18, 1, v21'); a('v_lshl_add_u32 v21, v3, 10, v21')
    stamp(2,1)
    a('s_cmp_ge_u32 s52, 4'); a('s_cbranch_scc1 L_noln')
    def red64(x,t):
        a('v_mov_b32 v%d, v%d'%(t,x)); a('v_permlane32_swap_b32 v%d, v%d'%(x,t)); a('v_add_f32 v%d, v%d, v%d'%(x,x,t)); red32('v_add_f32',x,t)
    a('v_mov_b32 v60, 0'); a('v_mov_b32 v62, 0'); a('s_mov_b32 exec_hi, 0x00ffffff')
    wait(mx)
    for k in range(4):
        a('v_lshlrev_b32 v%d, 16, v%d'%(24+2*k,96+k)); a('v_and_b32 v%d, 0xffff0000, v%d'%(25+2*k,96+k))
    a('v_pk_add_f32 v[32:33], v[24:25], v[26:27]'); a('v_pk_add_f32 v[34:35], v[28:29], v[30:31]'); a('v_pk_add_f32 v[32:33], v[32:33], v[34:35]')
    a('v_add_f32 v60, v32, v33'); a('s_mov_b32 exec_hi, -1'); red64(60,61)
    a('v_mul_f32 v60, 0xbb124925, v60'); a('v_mov_b32 v61, v60'); a('s_mov_b32 exec_hi, 0x00ffffff')
    for k in range(4): a('v_pk_add_f32 v[%d:%d], v[%d:%d], v[60:61]'%(32+2*k,33+2*k,24+2*k,25+2*k))
    a('v_pk_mul_f32 v[32:33], v[32:33], v[32:33]'); a('v_pk_mul_f32 v[34:35], v[34:35], v[34:35]')
    a('v_pk_fma_f32 v[32:33], v[36:37], v[36:37], v[32:33]'); a('v_pk_fma_f32 v[34:35], v[38:39], v[38:39], v[34:35]'); a('v_pk_add_f32 v[32:33], v[32:33], v[34:35]')
    a('v_add_f32 v62, v32, v33'); a('s_mov_b32 exec_hi, -1'); red64(62,63)
    a('v_mul_f32 v62, 0x3b124925, v62'); rb(62); rb(60)
    a('v_add_f32 v62, 0x3727c5ac, v62'); rb(62); a('v_sqrt_f32 v62, v62'); rb(62); a('v_rcp_f32 v63, v62')
    for k in range(8): a('v_add_f32 v%d, v60, v%d'%(24+k,24+k))
    for k in range(4): a('v_cvt_pk_bf16_f32 v%d, v%d, v%d'%(96+k,24+2*k,25+2*k))
    for k in range(4):
        a('v_lshlrev_b32 v%d, 16, v%d'%(24+2*k,96+k)); a('v_and_b32 v%d, 0xffff0000, v%d'%(25+2*k,96+k))
    for k in range(8): a('v_mul_f32 v%d, v63, v%d'%(32+k,24+k))
    for k in range(8): a('v_fma_f32 v%d, -v%d, v62, v%d'%(24+k,32+k,24+k))
    for k in range(8): a('v_fmac_f32 v%d, v%d, v63'%(32+k,24+k))
    for k in range(4): a('v_cvt_pk_bf16_f32 v%d, v%d, v%d'%(96+k,32+2*k,33+2*k))
    a('s_mov_b32 exec_hi, 0x00ffffff'); a('ds_write_b128 v4, v[96:99] offset:%d'%XN); a('s_mov_b32 exec_hi, -1'); lg()
    a('L_noln:')
    a('s_barrier'); stamp(3,1)
    auto[0]=gap
    for b in range(4):
        a('ds_read_u16 v%d, v6 offset:%d'%(104+b,XN+896*b)); a('ds_read_u16 v%d, v6 offset:%d'%(108+b,XN+896*b+16))
    stamp(4,1); wait(mq); stamp(5,1)
    lg()
    for b in range(4): a('v_lshl_or_b32 v%d, v%d, 16, v%d'%(104+b,108+b,104+b))
    for m,A in enumerate((52,44)):
        for k in range(4):
            a('v_perm_b32 v%d, v%d, v%d, s64'%(96+2*k,A+4+k,A+k)); a('v_perm_b32 v%d, v%d, v%d, s65'%(97+2*k,A+4+k,A+k))
        for b in (0,2,1,3):
            for c in range(8): a('v_dot2_f32_bf16 v%d, v%d, v%d, 0'%(64+8*b+c,96+c,104+b))
        for i in range(16): a('v_permlane32_swap_b32 v%d, v%d'%(64+i,80+i))
        for i in range(0,16,2): a('v_pk_add_f32 v[%d:%d], v[%d:%d], v[%d:%d]'%(64+i,65+i,64+i,65+i,80+i,81+i))
        for i in range(8): a('v_permlane16_swap_b32 v%d, v%d'%(64+i,72+i))
        for i in range(0,8,2): a('v_pk_add_f32 v[%d:%d], v[%d:%d], v[%d:%d]'%(64+i,65+i,64+i,65+i,72+i,73+i))
        for i in range(4): dpp('v_add_f32',112+4*m+i,64+i,64+i,'row_ror:8',0x3)
        for i in range(4): dpp('v_add_f32',112+4*m+i,68+i,68+i,'row_ror:8',0xc)
        a('ds_write_b128 v21, v[%d:%d] offset:%d'%(112+4*m,115+4*m,QP+8192*m))
    auto[0]=0
    a('s_add_u32 s101, s101, 0x01010101'); a('v_mov_b32 v4, s101')
    for k in range(4): a('s_lshr_b32 s%d, s101, %d'%(44+k,8*k)); a('s_mov_b32 s%d, 0x%08x'%(28+k,0x07060500+k))
    lg(); a('s_barrier')
    a('s_cmp_lg_u32 s52, %d'%(9 if 's' in drop else 0)); a('s_cbranch_scc1 L_noq')
    for m in range(2):
        for k in range(7): a('ds_read_b128 v[%d:%d], v2 offset:%d'%(64+28*m+4*k,67+28*m+4*k,QP+8192*m+1024*k))
    a('v_and_b32 v21, 15, v1'); a('v_lshlrev_b32 v21, 4, v21'); a('v_lshl_add_u32 v22, v20, 14, v21'); a('v_lshl_add_u32 v21, v20, 13, v21')
    for m in range(2):
        a('s_waitcnt lgkmcnt(%d)'%(7-7*m)); B=64+28*m
        for x,y in ((0,1),(2,3),(4,5),(0,2),(4,6),(0,4)):
            for e in (0,2): a('v_pk_add_f32 v[%d:%d], v[%d:%d], v[%d:%d]'%(B+4*x+e,B+4*x+e+1,B+4*x+e,B+4*x+e+1,B+4*y+e,B+4*y+e+1))
        tag(B)
        if m==0: a('buffer_store_dwordx4 v[64:67], v22, s[48:51], s6 offen sc1')
        else:
            a('s_cmp_ge_u32 s55, 56'); a('s_cbranch_scc1 L_noq'); a('buffer_store_dwordx4 v[92:95], v21, s[48:51], s7 offen sc1')
    a('L_noq:'); mst=cnt[0]; t0=nxt[0]
    stamp(1)
    work={t:[] for t in range(burst,70)}
    st={}
    def W(t,f): work[t].append(f)
    def dep(t): return [d for (x,d) in dsch if t>=x][-1] if dsch else min(d1,depth+max(0,(t-t_up)//slope))
    GL=[]
    for k in range(4):
        for h in range(2): GL.append('buffer_load_dwordx4 v[%d:%d], v22, s[48:51], s%d offen offset:%d sc1'%(64+8*k+4*h,67+8*k+4*h,68+k,1024*h))
    GL.append('buffer_load_dwordx4 v[8:11], v21, s[48:51], s72 offen sc1')
    def poll2():
        a('s_cmp_lg_u32 s52, %d'%wg_); a('s_cbranch_scc1 L_p2')
        a('s_lshl_b32 s68, s3, 11'); a('v_lshlrev_b32 v22, 4, v1')
        for k in range(1,4): a('s_add_u32 s%d, s68, %d'%(68+k,0x10000*k))
        a('s_lshl_b32 s5, s53, 13'); a('s_mul_i32 s7, s55, 112'); a('s_add_u32 s5, s5, s7'); a('s_add_u32 s72, s5, %d'%GP)
        a('v_min_u32 v21, 6, v16'); a('v_lshlrev_b32 v21, 4, v21'); a('v_lshl_add_u32 v21, v19, 15, v21')
        for l in GL: a(l)
        a('L_p2:'); st['p']=cnt[0]
    def poll3():
        a('s_cmp_lg_u32 s52, %d'%wg_); a('s_cbranch_scc1 L_p3'); wait(st['p'])
        if 'p' not in drop: spin('L_gs',GL,list(range(64,96))+[8,9,10,11])
        for x,y in ((0,1),(2,3),(0,2)):
            for e in (0,2,4,6): a('v_pk_add_f32 v[%d:%d], v[%d:%d], v[%d:%d]'%(64+8*x+e,65+8*x+e,64+8*x+e,65+8*x+e,64+8*y+e,65+8*y+e))
        for e in range(4): a('v_cvt_pk_bf16_f32 v%d, v%d, v%d'%(64+e,64+2*e,65+2*e))
        a('v_lshlrev_b32 v61, 3, v1'); a('ds_write_b64 v61, v[64:65] offset:%d'%QB); a('ds_write_b64 v61, v[66:67] offset:%d'%(QB+512))
        a('ds_write_b128 v22, v[8:11] offset:%d'%GU); a('v_mov_b32 v61, 0'); a('ds_write_b32 v61, v61 offset:%d'%(MX+128)); a('L_p3:')
    def poll4():
        a('v_and_b32 v60, 31, v1'); a('v_lshlrev_b32 v60, 4, v60'); a('v_mov_b32 v61, 0'); a('s_mov_b32 s61, 100000')
        a('L_p4:'); a('ds_read_b32 v7, v61 offset:%d'%(MX+128))
        a('ds_read_b128 v[8:11], v60 offset:%d'%QB); a('ds_read_b128 v[12:15], v60 offset:%d'%(QB+512)); lg()
        a('v_cmp_eq_u32 vcc, -1, v7'); a('s_cbranch_vccz L_p4d'); a('s_sub_u32 s61, s61, 1'); a('s_cbranch_scc0 L_p4'); a('L_p4d:'); stamp(2)
    st['p']=0
    if 'h' not in drop: W(t_poll,poll2)
    W(t_poll+t_g,poll3); tq=t_poll+t_g+t_q; W(tq,poll4)
    stack=[[],[]]; pool=list(range(64,96))
    def kpair(i):
        def f():
            wait(ms[i+1])
            r=[[pool.pop(0),pool.pop(0)] for h in range(2)]
            for k in range(1 if 'k' in drop else 4):
                for e in range(2):
                    for h in range(2):
                        a('v_dot2_f32_bf16 v%d, v%d, v%d, %s'%(r[h][e],slot(i+e)+k,8+4*h+k,'0' if k==0 else 'v%d'%r[h][e]))
            for h in range(2):
                merge(0,r[h][0],r[h][1],60); pool.append(r[h][1]); stack[h].append((1,r[h][0]))
            while len(stack[0])>1 and stack[0][-1][0]==stack[0][-2][0]:
                for h in range(2):
                    lv,y=stack[h].pop(); _,x=stack[h].pop(); merge(lv,x,y,60+h); pool.append(y); stack[h].append((lv+1,x))
        return f
    t=tq; n=0
    for i in range(0,32,2):
        while i+1>t-dep(t) or n>=kpt: t+=1; n=0
        W(t,kpair(i)); n+=1
        if i<16: assert t<40+i
    tk=t
    def soft():
        r0=stack[0][0][1]; r1=stack[1][0][1]
        a('v_cvt_pk_bf16_f32 v60, v%d, v%d'%(r0,r1)); a('v_lshlrev_b32 v8, 16, v60'); a('v_and_b32 v9, 0xffff0000, v60')
        a('v_mov_b32 v10, v8'); a('v_mov_b32 v11, v9'); a('v_permlane32_swap_b32 v10, v11'); a('v_max_f32 v10, v10, v11'); red32('v_max_f32',10,11)
        a('v_readlane_b32 s76, v10, 0'); a('v_readlane_b32 s77, v10, 32')
        for h in range(2):
            a('v_subrev_f32 v%d, s%d, v%d'%(8+h,76+h,8+h)); a('v_mul_f32 v%d, s66, v%d'%(8+h,8+h)); a('v_exp_f32 v%d, v%d'%(8+h,8+h))
        a('v_cvt_pk_bf16_f32 v60, v8, v9')
        a('v_lshlrev_b32 v13, 8, v3'); a('v_lshl_add_u32 v13, v23, 7, v13'); a('v_lshl_add_u32 v14, v5, 1, v13')
        a('ds_write_b16 v14, v60 offset:%d'%PP); a('ds_write_b16_d16_hi v14, v60 offset:%d'%(PP+64))
        for k in range(8): a('ds_read_b128 v[%d:%d], v13 offset:%d'%(96+4*k,99+4*k,PP+16*k))
        a('v_permlane32_swap_b32 v8, v9'); a('v_add_f32 v11, v8, v9'); red32('v_add_f32',11,9)
        a('v_lshlrev_b32 v12, 3, v3'); a('v_lshl_add_u32 v12, v23, 6, v12'); a('ds_write_b64 v12, v[10:11] offset:%d'%MX); lg(); stamp(3)
    W(tk,soft)
    def vpair(i):
        def f():
            wait(ms[i+1]); j=(i-32)//2; A=slot(i); B=slot(i+1)
            for k in range(4):
                a('v_perm_b32 v%d, v%d, v%d, s64'%(80+2*k,B+k,A+k)); a('v_perm_b32 v%d, v%d, v%d, s65'%(81+2*k,B+k,A+k))
            for d in range(2 if 'v' in drop else 8):
                for h in range(2): a('v_dot2_f32_bf16 v%d, v%d, v%d, %s'%(64+8*h+d,80+d,96+16*h+j,'0' if j==0 else 'v%d'%(64+8*h+d)))
        return f
    for i in range(32,64,2):
        t=i+1
        while t<64 and t-dep(t)<i+1: t+=1
        t=max(tk+(i-32)//(2*vpt),t); assert t<i+16 or i+16>63; W(t,vpair(i))
        if i==38: tv7=t
    def mlx(n,pub):
        def f():
            if pub: a('s_cmp_lg_u32 s52, %d'%wm_); a('s_cbranch_scc1 L_ml')
            a('v_lshlrev_b32 v13, 3, v19'); a('v_lshl_add_u32 v13, v23, 6, v13'); a('s_mov_b32 s61, 100000')
            a(n+':'); a('ds_read_b64 v[92:93], v13 offset:%d'%MX); lg()
            a('v_cmp_eq_u32 vcc, -1, v93'); a('s_cbranch_vccz %sd'%n); a('s_sub_u32 s61, s61, 1'); a('s_cbranch_scc0 '+n); a(n+'d:')
            a('v_mov_b32 v88, v92')
            for c in (Q1,Q2,HM): dpp('v_max_f32',88,88,88,c)
            if not pub:
                a('v_sub_f32 v90, v10, v88'); a('v_mul_f32 v90, s66, v90'); a('v_exp_f32 v90, v90'); a('v_mov_b32 v91, v90'); return
            a('v_sub_f32 v92, v92, v88'); a('v_mul_f32 v92, s66, v92'); a('v_exp_f32 v92, v92'); a('v_mul_f32 v89, v92, v93')
            for c in (Q1,Q2,HM): dpp('v_add_f32',89,89,89,c)
            a('v_lshlrev_b32 v13, 4, v23'); a('v_mov_b32 v90, v4'); a('v_mov_b32 v91, v4')
            a('s_mov_b32 exec_lo, 1'); a('s_mov_b32 exec_hi, 1'); a('buffer_store_dwordx4 v[88:91], v13, s[48:51], s62 offen offset:2048 sc1'); a('s_mov_b64 exec, -1'); a('L_ml:')
        return f
    if 'm' not in drop: W(tk+t_m,mlx('L_m1',1))
    W(63,mlx('L_m2',0))
    t_wd=max(t_wd,tk+1); t_wo=max(t_wo,t_wd+1)
    def wd_issue():
        a('v_mul_u32_u24 v56, 3584, v3'); a('v_lshlrev_b32 v57, 4, v1'); a('v_cmp_gt_u32 vcc, 56, v1'); a('v_mov_b32 v58, 0x40000000'); a('v_cndmask_b32 v57, v58, v57, vcc')
        a('v_lshl_add_u32 v58, v56, 1, v57'); a('v_add_u32 v59, 3584, v58'); a('v_add_u32 v57, v56, v57')
    W(t_wd,wd_issue)
    def wd_i(r):
        def f(): st['wd']=vm('buffer_load_dwordx4 v[%d:%d], v57, s[32:35], 0 offen offset:%d %s'%(232+4*r,235+4*r,896*r,ont))
        return f
    for r in range(4): W(t_wd+r*wsp,wd_i(r))
    t_wd+=3*wsp; t_wo=max(t_wo,t_wd+1)
    def wd_comp():
        a('v_lshlrev_b32 v45, 4, v19'); a('v_lshl_add_u32 v45, v3, 7, v45')
        a('ds_read_b128 v[24:27], v45 offset:%d'%GU); lg()
        for c in (Q1,Q2):
            for d in range(4): dpp('v_add_f32',24+d,24+d,24+d,c)
        for d in range(4): a('v_mov_b32_dpp v%d, v%d row_half_mirror row_mask:0xf bank_mask:0xf'%(28+d,24+d))
        for d in range(8): rb(24+d)
        for d in range(4): a('v_mul_f32 v%d, 0xbfb8aa3b, v%d'%(32+d,24+d))
        for d in range(4): a('v_exp_f32 v%d, v%d'%(32+d,32+d))
        for d in range(4): a('v_add_f32 v%d, 1.0, v%d'%(32+d,32+d))
        for d in range(4): a('v_rcp_f32 v%d, v%d'%(32+d,32+d))
        for d in range(4): a('v_mul_f32 v%d, v%d, v%d'%(24+d,24+d,32+d))
        for d in range(4): rb(24+d)
        for d in range(4): a('v_mul_f32 v%d, v%d, v%d'%(24+d,24+d,28+d))
        a('v_cvt_pk_bf16_f32 v24, v24, v25'); a('v_cvt_pk_bf16_f32 v25, v26, v27')
        a('v_readlane_b32 s76, v24, 0'); a('v_readlane_b32 s77, v25, 0')
        wait(st['wd'])
        for p in range(2):
            for k in range(4):
                A=232+8*p+k; a('v_perm_b32 v%d, v%d, v%d, s64'%(28+2*k,A+4,A)); a('v_perm_b32 v%d, v%d, v%d, s65'%(29+2*k,A+4,A))
            for d in range(8): a('v_dot2_f32_bf16 v%d, v%d, s%d, %s'%(48+d,28+d,76+p,'0' if p==0 else 'v%d'%(48+d)))
    twc=max(t_wd+dep(t_wd)+1,tv7+1); W(twc,wd_comp); assert twc<t_ml and tk+t_m<t_ml
    def wo_issue(p):
        def f():
            for r in (p,): st['wo']=vm('buffer_load_dwordx4 v[%d:%d], v%d, s[20:23], 0 offen offset:%d %s'%(200+4*r,203+4*r,58+(r>>2),896*(r&3),ont))
        return f
    def wo_perm():
        wait(st['wo'])
        for p in range(4):
            for k in range(4):
                A=200+8*p+k; a('v_perm_b32 v%d, v%d, v%d, s64'%(192+8*p+2*k,A+4,A)); a('v_perm_b32 v%d, v%d, v%d, s65'%(193+8*p+2*k,A+4,A))
    late = t_wo>=56
    for p in range(8): W(min(63,t_wo+(p if wsp else p&~1)),wo_issue(p))
    if not late: W(min(64,t_wo+7+dep(t_wo+7)),wo_perm)
    ML='buffer_load_dwordx3 v[24:26], v40, s[48:51], s67 offen offset:2048 sc1'
    def ml1():
        a('s_lshl_b32 s67, s3, 15'); a('s_add_u32 s67, s67, %d'%REC1); a('s_lshr_b32 s5, s4, 2'); a('s_lshl_b32 s5, s5, 4')
        a('v_lshl_add_u32 v40, v19, 12, s5'); st['ml']=vm(ML) if 'm' not in drop else 0
        a('s_lshl_b32 s5, s4, 8'); a('v_lshlrev_b32 v27, 12, v19'); a('v_lshl_add_u32 v27, v16, 2, v27'); a('v_lshl_add_u32 v27, v3, 5, v27'); a('v_add_u32 v27, s5, v27')
        a('v_cmp_eq_u32 vcc, s4, v19'); a('v_mov_b32 v36, 0x40000000'); a('v_cndmask_b32 v27, v27, v36, vcc')
        a('v_and_b32 v36, 3, v16'); a('v_lshlrev_b32 v36, 3, v36'); a('v_lshrrev_b32 v41, v36, v4'); a('v_cndmask_b32 v41, v41, 0, vcc')
        a('v_mul_u32_u24 v37, %d, v19'%WS); a('v_lshrrev_b32 v36, 2, v16'); a('v_mul_u32_u24 v36, %d, v36'%DH); a('v_add_u32 v37, v37, v36')
        a('v_and_b32 v36, 3, v16'); a('v_lshl_add_u32 v37, v36, 2, v37'); a('v_lshl_add_u32 v37, v3, 4, v37'); a('s_lshl_b32 s5, s4, 7'); a('v_add_u32 v37, s5, v37')
        a('v_mul_u32_u24 v28, %d, v3'%WS); a('v_lshl_add_u32 v28, v1, 4, v28')
        a('v_and_b32 v29, 3, v1'); a('v_mul_u32_u24 v29, %d, v29'%(2*WS)); a('v_bfe_u32 v30, v1, 2, 1'); a('v_mul_u32_u24 v30, %d, v30'%DH); a('v_add_u32 v29, v29, v30')
        a('v_lshl_add_u32 v29, v16, 4, v29'); a('v_lshl_add_u32 v29, v3, 7, v29')
        a('v_lshlrev_b32 v30, 2, v0')
        a('s_lshl_b32 s68, s53, 17'); a('s_add_u32 s68, s68, %d'%REC2); a('s_lshl_b32 s5, s55, 7'); a('s_add_u32 s68, s68, s5')
        a('v_lshlrev_b32 v31, 11, v19'); a('v_lshl_add_u32 v31, v16, 4, v31')
        a('s_mul_i32 s5, s53, 896'); a('s_lshl_b32 s7, s55, 6'); a('s_add_u32 s5, s5, s7'); a('v_lshl_add_u32 v32, v16, 3, s5')
        for k in range(1,8): a('s_add_u32 s%d, s68, %d'%(68+k,16384*k))
        vm('buffer_load_dwordx2 v[34:35], v32, s[36:39], 0 offen')
    def ml2():
        wait(st['ml']); spin('L_mls',[ML],'v_cmp_ne_u32 vcc, s101, v26')
        a('v_mov_b32 v36, v24')
        for c in (Q1,Q2,HM): dpp('v_max_f32',36,36,36,c)
        a('v_sub_f32 v24, v24, v36'); a('v_mul_f32 v24, s66, v24'); a('v_exp_f32 v24, v24'); a('v_mul_f32 v25, v24, v25')
        for c in (Q1,Q2,HM): dpp('v_add_f32',25,25,25,c)
        a('v_rcp_f32 v25, v25'); a('v_mul_f32 v33, v24, v25'); a('v_readlane_b32 s76, v33, s4')
    W(t_ml,ml1)
    for t in range(t0,65):
        if t<64:
            if t-dep(t)>=0: wait(ms[t-dep(t)])
            if asym and asym[0]<=t<asym[1] and (t-asym[0])%asym[3]==0:
                a('s_cmp_lg_u32 s96, 0'); L.append('s_cbranch_scc1 1'); wait(ms[t-dep(t)+asym[2]])
            issue(t)
        if t in prio:
            a('s_cmp_lt_u32 s52, 4'); a('s_cbranch_scc1 L_pr%d'%t); a('s_setprio %d'%prio[t]); a('L_pr%d:'%t)
        for f in work[t]: f()
        if pro==2 and t in tst: stamp(2+tst.index(t),2)
    for t in range(65,70): assert not work[t]
    stamp(4)
    OL='buffer_load_dword v38, v27, s[48:51], s67 offen sc1'
    def xred(base,src,soff,lab):
        a('ds_write_b128 v28, v[%d:%d] offset:%d'%(src,src+3,base)); a('ds_write_b128 v28, v[%d:%d] offset:%d'%(src+4,src+7,base+DH))
        if not lab: st['ol']=vm(OL)
        lg(); a('s_barrier')
        if lab: a('s_cmp_eq_u32 s52, 7'); a('s_cbranch_scc1 '+lab)
        a('ds_read_b128 v[80:83], v29 offset:%d'%base); a('ds_read_b128 v[84:87], v29 offset:%d'%(base+WS))
        if lab: lg()
        else: a('ds_read_b32 v39, v37 offset:%d'%base); a('s_waitcnt lgkmcnt(1)')
        a('v_pk_add_f32 v[80:81], v[80:81], v[84:85]'); a('v_pk_add_f32 v[82:83], v[82:83], v[86:87]')
        for c in (Q1,Q2):
            for d in range(4): dpp('v_add_f32',80+d,80+d,80+d,c)
        tag(80)
        a('s_mov_b32 exec_lo, 0x11111111'); a('s_mov_b32 exec_hi, 0x11111111')
        vm('buffer_store_dwordx4 v[80:83], v30, s[48:51], %s offen sc1'%soff)
    for d in range(8): a('v_permlane32_swap_b32 v%d, v%d'%(64+d,72+d))
    for d in range(0,8,2): a('v_pk_add_f32 v[%d:%d], v[%d:%d], v[%d:%d]'%(64+d,65+d,64+d,65+d,72+d,73+d))
    for d in range(0,8,2): a('v_pk_mul_f32 v[%d:%d], v[%d:%d], v[90:91]'%(64+d,65+d,64+d,65+d))
    xred(OR,64,'s62',None)
    a('s_mov_b64 exec, -1')
    if late: wo_perm()
    ml2(); lg(); a('v_mul_f32 v24, s76, v39')
    wait(st['ol']); spin('L_os',[OL],'v_cmp_ne_u32_sdwa vcc, v38, v41 src0_sel:BYTE_0 src1_sel:BYTE_0')
    stamp(5)
    a('v_fmac_f32 v24, v38, v33')
    for c in (Q1,Q2,HM): dpp('v_add_f32',24,24,24,c)
    a('v_mov_b32_dpp v25, v24 row_ror:8 row_mask:0xf bank_mask:0xf'); a('v_cvt_pk_bf16_f32 v24, v24, v25')
    for p in range(4): a('v_readlane_b32 s%d, v24, %d'%(76+p,16*p))
    for p in range(4):
        for d in range(8): a('v_dot2_f32_bf16 v%d, v%d, s%d, v%d'%(48+d,192+8*p+d,76+p,48+d))
    xred(OP,48,'s63','L_fin')
    a('s_branch L_done')
    a('L_fin:')
    a('s_cmp_ge_u32 s55, 14'); a('s_cbranch_scc1 L_done')
    FL=['buffer_load_dwordx4 v[%d:%d], v31, s[48:51], s%d offen sc1'%(96+4*k,99+4*k,68+k) for k in range(8)]
    for l in FL: a(l)
    a('s_waitcnt vmcnt(0)'); spin('L_fs',FL,list(range(96,128)))
    for s in (16,8,4):
        for k in range(0,s,2): a('v_pk_add_f32 v[%d:%d], v[%d:%d], v[%d:%d]'%(96+k,97+k,96+k,97+k,96+s+k,97+s+k))
    a('v_lshlrev_b32 v36, 16, v34'); a('v_and_b32 v37, 0xffff0000, v34'); a('v_lshlrev_b32 v38, 16, v35'); a('v_and_b32 v39, 0xffff0000, v35')
    for c in (Q1,Q2,HM):
        for d in range(4): dpp('v_add_f32',96+d,96+d,96+d,c)
    a('v_pk_add_f32 v[96:97], v[96:97], v[36:37]'); a('v_pk_add_f32 v[98:99], v[98:99], v[38:39]')
    a('v_cvt_pk_bf16_f32 v96, v96, v97'); a('v_cvt_pk_bf16_f32 v97, v98, v99')
    a('s_mov_b32 exec_lo, 0x01010101'); a('s_mov_b32 exec_hi, 0x01010101')
    a('buffer_store_dwordx2 v[96:97], v32, s[40:43], 0 offen')
    a('s_cmp_lg_u32 s2, 0'); a('s_cbranch_scc1 L_done'); a('s_mov_b64 exec, 1'); a('s_mov_b32 s5, %d'%CN); a('buffer_store_dword v4, off, s[48:51], s5 sc1')
    a('L_done:')
    if stamps:
        stamp(6); a('s_getreg_b32 s97, hwreg(HW_REG_XCC_ID)'); srd(8,86,'0x20000000',1<<20)
        a('s_lshl_b32 s5, s2, 3'); a('s_add_u32 s5, s5, s52'); a('s_lshl_b32 s5, s5, 5'); a('s_mov_b64 exec, 1')
        for k in range(8): a('v_mov_b32 v%d, s%d'%(8+k,90+k if k!=6 else 100))
        a('buffer_store_dwordx4 v[8:11], off, s[8:11], s5'); a('buffer_store_dwordx4 v[12:15], off, s[8:11], s5 offset:16')
    a('L_end:')
    ref=open('parallel_sum__sliding_block_cached__swiglu_ffn__decode.s.ref').read().split('\n')
    i0=[i for i,l in enumerate(ref) if l.startswith(KN+':')][0]; i1=[i for i,l in enumerate(ref) if l.startswith('s_endpgm')][0]
    hdr=['; @launch grid=(256,1,1) block=(512,1,1) lds=%d'%LDS if l.startswith('; @launch') else l for l in ref[:i0+1]]
    body=[l if l.endswith(':') else '    '+l for l in pad(L)]
    return '\n'.join(hdr+body+ref[i1:])
if __name__=='__main__':
    from asm import build
    name=sys.argv[1]; kw=eval('dict(%s)'%(sys.argv[2] if len(sys.argv)>2 else ''))
    open(name+'.s','w').write(gen(**kw)); build(name+'.s',name+'.co')
```

```python
import sys
sys.path.insert(0,'exp'); sys.path.insert(0,'k')
from hz import pad
KN="parallel_sum__sliding_block_cached__swiglu_ffn__decode_kernel"
XN=0; QP=12288; QB=6144; GU=7168; MX=9216; LS=9280; PP=9472; OR=12288; WS=2320; DH=1152; OP=OR+8*WS; LDS=OP+8*WS
GP=0x40000; CN=0x80000; REC1=0x100000; REC2=0x200000
def gen(h1=0, lg2=0, ns=0, pt=0, lay=0, rnd=1, depth=4, burst=5, nt='nt', wnt='nt', stamps=False, t_gu=8, t_poll=20, t_wd=34, t_wo=40, t_ml=58, pf=1, gap=50, t_g=5, cx=0, asym=(8,56,1,1), wg_=1, wm_=5, dsch=None, wsp=0, vpt=3, prio={}, arr=0, nsh=32, shard=0, t_q=4, t_m=3, tst=(12,20,25,29), gmin=0, hold=0, d1=8, t_up=56, slope=1, kpt=2, ont='', drop='', bar0=1, pro=0, xnt='', qnt='nt', t_ar=2):
    CN,REC2=(0x41e00,0x80000) if lay else (0x80000,0x200000)
    L=[]; auto=[0]; acc=[0]; nxt=[burst]
    def a(x):
        L.append(x)
        if auto[0] and x.startswith('v_'):
            acc[0]+=1
            if acc[0]>=auto[0]: acc[0]=0; issue(nxt[0]); nxt[0]+=1
    cnt=[0]
    def vm(s): a(s); cnt[0]+=1; return cnt[0]
    def wait(m): a('s_waitcnt vmcnt(%d)'%min(63,cnt[0]-m))
    def lg(): a('s_waitcnt lgkmcnt(0)')
    def stamp(k,p=0):
        if stamps and (p==pro or k in (1,6)): a('s_memrealtime s[88:89]'); lg(); a('s_mov_b32 s%d, s88'%(90+k if k<6 else 100))
    def srd(d,b,off,n):
        if off is None: a('s_mov_b32 s%d, s%d'%(d,b)); a('s_mov_b32 s%d, s%d'%(d+1,b+1))
        else: a('s_add_u32 s%d, s%d, %s'%(d,b,off)); a('s_addc_u32 s%d, s%d, 0'%(d+1,b+1))
        a('s_mov_b32 s%d, %s'%(d+2,n)); a('s_mov_b32 s%d, 0x20000'%(d+3))
    def rb(v): a('v_cvt_pk_bf16_f32 v%d, v%d, v%d'%(v,v,v)); a('v_and_b32 v%d, 0xffff0000, v%d'%(v,v))
    def dpp(op,d,s0,s1,ctl,bank=0xf): a('%s_dpp v%d, v%d, v%d %s row_mask:0xf bank_mask:0x%x'%(op,d,s0,s1,ctl,bank))
    Q1='quad_perm:[1,0,3,2]'; Q2='quad_perm:[2,3,0,1]'; HM='row_half_mirror'
    def merge(lv,x,y,t):
        if lv==0: a('v_permlane16_swap_b32 v%d, v%d'%(x,y)); a('v_add_f32 v%d, v%d, v%d'%(x,x,y))
        elif lv==1: dpp('v_add_f32',x,x,x,'row_ror:8',0x3); dpp('v_add_f32',x,y,y,'row_ror:8',0xc)
        elif lv==2: dpp('v_add_f32',x,x,x,HM,0x5); dpp('v_add_f32',x,y,y,HM,0xa)
        else:
            m='s[56:57]' if lv==3 else 's[58:59]'
            a('v_cndmask_b32 v%d, v%d, v%d, %s'%(t,y,x,m)); a('v_cndmask_b32 v%d, v%d, v%d, %s'%(x,x,y,m))
            dpp('v_add_f32',x,t,x,Q2 if lv==3 else Q1)
    def red32(op,x,t):
        for c in ('row_ror:8','row_ror:4','row_ror:2','row_ror:1'): dpp(op,x,x,x,c)
        a('v_mov_b32 v%d, v%d'%(t,x)); a('v_permlane16_swap_b32 v%d, v%d'%(x,t)); a('%s v%d, v%d, v%d'%(op,x,x,t))
    def spin(name,load,rs):
        a('s_mov_b32 s61, 20000')
        a(name+'_c:')
        chk(rs); a('s_cbranch_vccz %s_d'%name)
        a('s_sub_u32 s61, s61, 1'); a('s_cbranch_scc1 %s_d'%name)
        for l in load: a(l)
        a('s_waitcnt vmcnt(0)'); a('s_branch %s_c'%name)
        a(name+'_d:')
    def chk(rs):
        if isinstance(rs,str): a(rs); return
        for i,r in enumerate(rs): a('v_xor_b32 v%d, s%d, v%d'%(r,44+(i&3),r))
        for i in range(0,len(rs),2):
            k=(i>>1)&3
            if i<8: a('v_or_b32 v%d, v%d, v%d'%(60+k,rs[i],rs[i+1]))
            else: a('v_or3_b32 v%d, v%d, v%d, v%d'%(60+k,60+k,rs[i],rs[i+1]))
        a('v_or3_b32 v60, v60, v61, v62'); a('v_or_b32 v60, v60, v63'); a('v_and_b32 v60, 0xff, v60'); a('v_cmp_ne_u32 vcc, 0, v60')
    def tag(r,rn=0):
        if rn:
            for k in range(4): a('v_add_u32 v%d, 0x80, v%d'%(r+k,r+k))
        for k in range(4): a('v_perm_b32 v%d, v%d, v4, s%d'%(r+k,r+k,28+k))
    a('s_cmp_ge_u32 s2, 256'); a('s_cbranch_scc1 L_end')
    a('s_load_dwordx16 s[64:79], s[0:1], 0'); a('s_load_dwordx8 s[80:87], s[0:1], 64')
    if stamps: a('s_memrealtime s[88:89]')
    if pf:
        a('s_getpc_b64 s[98:99]'); a('v_lshlrev_b32 v42, 6, v0'); a('v_min_u32 v42, L_end-%s-64, v42'%KN); vm('global_load_dword v43, v42, s[98:99]')
    a('v_and_b32 v1, 63, v0'); a('v_lshrrev_b32 v3, 6, v0'); a('v_readfirstlane_b32 s52, v3'); a('v_lshlrev_b32 v2, 4, v0')
    a('s_lshr_b32 s3, s2, 3'); a('s_and_b32 s4, s2, 7')
    a('s_lshl_b32 s5, s3, 23'); a('s_xor_b32 s6, s4, %d'%cx); a('s_lshl_b32 s6, s6, 18'); a('s_add_u32 s5, s5, s6'); a('s_add_u32 s5, s5, %d'%(12288*512))
    a('s_lshr_b32 s53, s2, 6'); a('s_and_b32 s55, s2, 63')
    a('s_mul_i32 s6, s53, %d'%(112*8192)); a('s_lshl_b32 s7, s55, 7'); a('s_add_u32 s6, s6, s7'); a('s_sub_u32 s7, %d, s7'%(112*8192))
    a('s_cmp_ge_u32 s55, 28'); a('s_cselect_b32 s56, 28, 0'); a('s_cselect_b32 s57, 4, 0'); a('s_sub_u32 s56, s55, s56')
    a('s_mul_i32 s58, s53, %d'%(112*3584)); a('s_lshl_b32 s59, s56, 7'); a('s_add_u32 s58, s58, s59'); a('s_sub_u32 s59, %d, s59'%(112*3584))
    a('s_cmp_ge_u32 s55, 56'); a('s_cselect_b32 s59, 0, s59')
    a('v_mul_u32_u24 v4, 896, v3'); a('v_lshl_add_u32 v4, v1, 4, v4')
    a('v_lshrrev_b32 v16, 3, v1'); a('v_and_b32 v19, 7, v1'); a('v_lshl_add_u32 v6, v3, 4, v16')
    a('v_lshlrev_b32 v22, 13, v6'); a('v_lshl_add_u32 v22, v19, 4, v22')
    a('v_mul_u32_u24 v17, 3584, v6'); a('v_lshl_add_u32 v17, v19, 4, v17')
    a('s_mov_b32 s54, 0x10000'); a('s_mov_b32 s61, 28672'); a('s_mov_b32 s60, 0'); a('s_cmp_ge_u32 s55, 28')
    lg()
    if stamps: a('s_mov_b32 s90, s88')
    a('s_cselect_b32 s76, s78, s76'); a('s_cselect_b32 s77, s79, s77')
    a('s_load_dword s101, s[86:87], %d'%CN)
    srd(36,64,None,3584); srd(24,76,'s58',0 if 'g' in drop else 's59'); srd(16,70,'s6',0 if 'q' in drop else 's7'); srd(8,66,'s5',1<<18); srd(48,86,None,0x400000)
    mx=vm('buffer_load_dwordx4 v[96:99], v4, s[36:39], 0 offen '+xnt)
    vm('buffer_load_dwordx4 v[52:55], v22, s[16:19], 0 offen '+qnt)
    vm('buffer_load_dwordx4 v[56:59], v22, s[16:19], s54 offen '+qnt)
    vm('buffer_load_dwordx4 v[44:47], v17, s[24:27], 0 offen '+wnt)
    mq=vm('buffer_load_dwordx4 v[48:51], v17, s[24:27], s61 offen '+wnt)
    a('s_lshl_b32 s62, s2, 12'); a('s_add_u32 s62, s62, %d'%REC1)
    a('s_lshl_b32 s63, s2, 11'); a('s_add_u32 s63, s63, %d'%REC2)
    a('v_mov_b32 v60, -1'); a('v_lshlrev_b32 v61, 2, v1'); a('ds_write_b32 v61, v60 offset:%d'%MX)
    mclr=cnt[0]
    ms={}
    def slot(t): return 128+4*t if t<32 else (24+4*(t-32) if t<40 else 128+4*((t-40)%16))
    def issue(t):
        if t==32: a('s_mov_b32 s60, 0')
        ms[t]=vm('buffer_load_dwordx4 v[%d:%d], v2, s[%d:%d], s60 offen %s'%(slot(t),slot(t)+3,8 if t<32 else 12,11 if t<32 else 15,nt))
        a('s_add_u32 s60, s60, 0x2000')
    if bar0: a('s_barrier')
    for t in range(burst): issue(t)
    srd(12,68,'s5',1<<18); srd(40,82,None,3584)
    a('s_mul_i32 s5, s55, %d'%(28*896)); srd(32,80,'s5',0 if 'o' in drop else 28*896)
    a('s_mul_i32 s5, s55, %d'%(64*896)); srd(20,72,'s5',0 if 'o' in drop else 64*896)
    a('s_lshl_b32 s6, s53, 16'); a('s_lshl_b32 s5, s55, 8'); a('s_add_u32 s6, s6, s5')
    a('s_add_u32 s7, s57, s53'); a('s_lshl_b32 s7, s7, 15'); a('s_lshl_b32 s5, s56, 8'); a('s_add_u32 s7, s7, s5'); a('s_add_u32 s7, s7, %d'%GP)
    a('s_mov_b32 s56, 0xcccccccc'); a('s_mov_b32 s57, s56'); a('s_mov_b32 s58, 0xaaaaaaaa'); a('s_mov_b32 s59, s58')
    a('s_mov_b32 s64, 0x05040100'); a('s_mov_b32 s65, 0x07060302'); a('s_mov_b32 s66, 0x3db8aa3b')
    a('s_getreg_b32 s96, hwreg(HW_REG_XCC_ID)'); a('s_and_b32 s96, s96, 1')
    a('s_mul_i32 s5, s53, 224'); a('v_lshl_add_u32 v6, v6, 1, s5'); a('v_lshrrev_b32 v23, 5, v1')
    a('v_and_b32 v5, 31, v1'); a('v_bfrev_b32 v5, v5'); a('v_lshrrev_b32 v5, 27, v5')
    a('v_lshrrev_b32 v20, 4, v1'); a('v_lshlrev_b32 v21, 8, v20'); a('v_lshl_add_u32 v21, v19, 5, v21'); a('v_and_b32 v18, 8, v1'); a('v_lshl_add_u32 v21, v18, 1, v21'); a('v_lshl_add_u32 v21, v3, 10, v21')
    stamp(2,1)
    a('s_cmp_ge_u32 s52, 4'); a('s_cbranch_scc1 L_noln')
    def red64(x,t):
        a('v_mov_b32 v%d, v%d'%(t,x)); a('v_permlane32_swap_b32 v%d, v%d'%(x,t)); a('v_add_f32 v%d, v%d, v%d'%(x,x,t)); red32('v_add_f32',x,t)
    a('v_mov_b32 v60, 0'); a('v_mov_b32 v62, 0'); a('s_mov_b32 exec_hi, 0x00ffffff')
    wait(mx)
    for k in range(4):
        a('v_lshlrev_b32 v%d, 16, v%d'%(24+2*k,96+k)); a('v_and_b32 v%d, 0xffff0000, v%d'%(25+2*k,96+k))
    a('v_pk_add_f32 v[32:33], v[24:25], v[26:27]'); a('v_pk_add_f32 v[34:35], v[28:29], v[30:31]'); a('v_pk_add_f32 v[32:33], v[32:33], v[34:35]')
    a('v_add_f32 v60, v32, v33'); a('s_mov_b32 exec_hi, -1'); red64(60,61)
    a('v_mul_f32 v60, 0xbb124925, v60'); a('v_mov_b32 v61, v60'); a('s_mov_b32 exec_hi, 0x00ffffff')
    for k in range(4): a('v_pk_add_f32 v[%d:%d], v[%d:%d], v[60:61]'%(32+2*k,33+2*k,24+2*k,25+2*k))
    a('v_pk_mul_f32 v[32:33], v[32:33], v[32:33]'); a('v_pk_mul_f32 v[34:35], v[34:35], v[34:35]')
    a('v_pk_fma_f32 v[32:33], v[36:37], v[36:37], v[32:33]'); a('v_pk_fma_f32 v[34:35], v[38:39], v[38:39], v[34:35]'); a('v_pk_add_f32 v[32:33], v[32:33], v[34:35]')
    a('v_add_f32 v62, v32, v33'); a('s_mov_b32 exec_hi, -1'); red64(62,63)
    a('v_mul_f32 v62, 0x3b124925, v62'); rb(62); rb(60)
    a('v_add_f32 v62, 0x3727c5ac, v62'); rb(62); a('v_sqrt_f32 v62, v62'); rb(62); a('v_rcp_f32 v63, v62')
    for k in range(8): a('v_add_f32 v%d, v60, v%d'%(24+k,24+k))
    for k in range(4): a('v_cvt_pk_bf16_f32 v%d, v%d, v%d'%(96+k,24+2*k,25+2*k))
    for k in range(4):
        a('v_lshlrev_b32 v%d, 16, v%d'%(24+2*k,96+k)); a('v_and_b32 v%d, 0xffff0000, v%d'%(25+2*k,96+k))
    for k in range(8): a('v_mul_f32 v%d, v63, v%d'%(32+k,24+k))
    for k in range(8): a('v_fma_f32 v%d, -v%d, v62, v%d'%(24+k,32+k,24+k))
    for k in range(8): a('v_fmac_f32 v%d, v%d, v63'%(32+k,24+k))
    for k in range(4): a('v_cvt_pk_bf16_f32 v%d, v%d, v%d'%(96+k,32+2*k,33+2*k))
    a('s_mov_b32 exec_hi, 0x00ffffff'); a('ds_write_b128 v4, v[96:99] offset:%d'%XN); a('s_mov_b32 exec_hi, -1'); lg()
    a('L_noln:')
    a('s_barrier'); stamp(3,1)
    auto[0]=gap
    for b in range(4):
        a('ds_read_u16 v%d, v6 offset:%d'%(104+b,XN+896*b)); a('ds_read_u16 v%d, v6 offset:%d'%(108+b,XN+896*b+16))
    stamp(4,1); wait(mq); stamp(5,1)
    lg()
    for b in range(4): a('v_lshl_or_b32 v%d, v%d, 16, v%d'%(104+b,108+b,104+b))
    for m,A in enumerate((52,44)):
        for k in range(4):
            a('v_perm_b32 v%d, v%d, v%d, s64'%(96+2*k,A+4+k,A+k)); a('v_perm_b32 v%d, v%d, v%d, s65'%(97+2*k,A+4+k,A+k))
        for b in (0,2,1,3):
            for c in range(8): a('v_dot2_f32_bf16 v%d, v%d, v%d, 0'%(64+8*b+c,96+c,104+b))
        for i in range(16): a('v_permlane32_swap_b32 v%d, v%d'%(64+i,80+i))
        for i in range(0,16,2): a('v_pk_add_f32 v[%d:%d], v[%d:%d], v[%d:%d]'%(64+i,65+i,64+i,65+i,80+i,81+i))
        for i in range(8): a('v_permlane16_swap_b32 v%d, v%d'%(64+i,72+i))
        for i in range(0,8,2): a('v_pk_add_f32 v[%d:%d], v[%d:%d], v[%d:%d]'%(64+i,65+i,64+i,65+i,72+i,73+i))
        for i in range(4): dpp('v_add_f32',112+4*m+i,64+i,64+i,'row_ror:8',0x3)
        for i in range(4): dpp('v_add_f32',112+4*m+i,68+i,68+i,'row_ror:8',0xc)
        a('ds_write_b128 v21, v[%d:%d] offset:%d'%(112+4*m,115+4*m,QP+8192*m))
    auto[0]=0
    a('s_add_u32 s101, s101, 0x01010101'); a('v_mov_b32 v4, s101')
    for k in range(4): a('s_bfe_u32 s%d, s101, 0x%x'%(44+k,0x80000+8*k)); a('s_mov_b32 s%d, 0x%08x'%(28+k,0x07060500+k))
    lg(); a('s_barrier')
    a('s_cmp_lg_u32 s52, %d'%(9 if 's' in drop else 0)); a('s_cbranch_scc1 L_noq')
    for m in range(2):
        for k in range(7): a('ds_read_b128 v[%d:%d], v2 offset:%d'%(64+28*m+4*k,67+28*m+4*k,QP+8192*m+1024*k))
    a('v_and_b32 v21, 15, v1'); a('v_lshlrev_b32 v21, 4, v21'); a('v_lshl_add_u32 v22, v20, 14, v21'); a('v_lshl_add_u32 v21, v20, 13, v21')
    for m in range(2):
        a('s_waitcnt lgkmcnt(%d)'%(7-7*m)); B=64+28*m
        for x,y in ((0,1),(2,3),(4,5),(0,2),(4,6),(0,4)):
            for e in (0,2): a('v_pk_add_f32 v[%d:%d], v[%d:%d], v[%d:%d]'%(B+4*x+e,B+4*x+e+1,B+4*x+e,B+4*x+e+1,B+4*y+e,B+4*y+e+1))
        tag(B,rnd)
        if m==0: a('buffer_store_dwordx4 v[64:67], v22, s[48:51], s6 offen sc1')
        else:
            a('s_cmp_ge_u32 s55, 56'); a('s_cbranch_scc1 L_noq'); a('buffer_store_dwordx4 v[92:95], v21, s[48:51], s7 offen sc1')
    a('L_noq:'); mst=cnt[0]; t0=nxt[0]
    stamp(1)
    work={t:[] for t in range(burst,70)}
    st={}
    def W(t,f): work[t].append(f)
    def dep(t): return [d for (x,d) in dsch if t>=x][-1] if dsch else min(d1,depth+max(0,(t-t_up)//slope))
    GL=[]
    for k in range(4):
        for h in range(2): GL.append('buffer_load_dwordx4 v[%d:%d], v22, s[48:51], s%d offen offset:%d sc1'%(64+8*k+4*h,67+8*k+4*h,68+k,1024*h))
    GL.append('buffer_load_dwordx4 v[8:11], v21, s[48:51], s72 offen sc1')
    def poll2():
        a('s_cmp_lg_u32 s52, %d'%wg_); a('s_cbranch_scc1 L_p2')
        a('s_lshl_b32 s68, s3, 11'); a('v_lshlrev_b32 v22, 4, v1')
        for k in range(1,4): a('s_add_u32 s%d, s68, %d'%(68+k,0x10000*k))
        a('s_lshl_b32 s5, s53, 13'); a('s_mul_i32 s7, s55, 112'); a('s_add_u32 s5, s5, s7'); a('s_add_u32 s72, s5, %d'%GP)
        a('v_min_u32 v21, 6, v16'); a('v_lshlrev_b32 v21, 4, v21'); a('v_lshl_add_u32 v21, v19, 15, v21')
        for l in GL: a(l)
        a('L_p2:'); st['p']=cnt[0]
    def poll3():
        a('s_cmp_lg_u32 s52, %d'%wg_); a('s_cbranch_scc1 L_p3'); wait(st['p'])
        if 'p' not in drop: spin('L_gs',GL,list(range(64,96))+[8,9,10,11])
        for x,y in ((0,1),(2,3),(0,2)):
            for e in (0,2,4,6): a('v_pk_add_f32 v[%d:%d], v[%d:%d], v[%d:%d]'%(64+8*x+e,65+8*x+e,64+8*x+e,65+8*x+e,64+8*y+e,65+8*y+e))
        for e in range(4): a('v_cvt_pk_bf16_f32 v%d, v%d, v%d'%(64+e,64+2*e,65+2*e))
        a('v_lshlrev_b32 v61, 3, v1'); a('ds_write_b64 v61, v[64:65] offset:%d'%QB); a('ds_write_b64 v61, v[66:67] offset:%d'%(QB+512))
        a('ds_write_b128 v22, v[8:11] offset:%d'%GU); a('v_mov_b32 v61, 0'); a('ds_write_b32 v61, v61 offset:%d'%(MX+128)); a('L_p3:')
    def poll4():
        a('v_and_b32 v60, 31, v1'); a('v_lshlrev_b32 v60, 4, v60'); a('v_mov_b32 v61, 0'); a('s_mov_b32 s61, 100000')
        a('L_p4:'); a('ds_read_b32 v7, v61 offset:%d'%(MX+128))
        a('ds_read_b128 v[8:11], v60 offset:%d'%QB); a('ds_read_b128 v[12:15], v60 offset:%d'%(QB+512)); lg()
        a('v_cmp_eq_u32 vcc, -1, v7'); a('s_cbranch_vccz L_p4d'); a('s_sub_u32 s61, s61, 1'); a('s_cbranch_scc0 L_p4'); a('L_p4d:'); stamp(2)
    st['p']=0
    if 'h' not in drop: W(t_poll,poll2)
    W(t_poll+t_g,poll3); tq=t_poll+t_g+t_q; W(tq,poll4)
    stack=[[],[]]; pool=list(range(64,96))
    def kpair(i):
        def f():
            wait(ms[i+1])
            r=[[pool.pop(0),pool.pop(0)] for h in range(2)]
            for k in range(1 if 'k' in drop else 4):
                for e in range(2):
                    for h in range(2):
                        a('v_dot2_f32_bf16 v%d, v%d, v%d, %s'%(r[h][e],slot(i+e)+k,8+4*h+k,'0' if k==0 else 'v%d'%r[h][e]))
            for h in range(2):
                merge(0,r[h][0],r[h][1],60); pool.append(r[h][1]); stack[h].append((1,r[h][0]))
            while len(stack[0])>1 and stack[0][-1][0]==stack[0][-2][0]:
                for h in range(2):
                    lv,y=stack[h].pop(); _,x=stack[h].pop(); merge(lv,x,y,60+h); pool.append(y); stack[h].append((lv+1,x))
        return f
    t=tq; n=0
    for i in range(0,32,2):
        while i+1>t-dep(t) or n>=kpt: t+=1; n=0
        W(t,kpair(i)); n+=1
        if i<16: assert t<40+i
    tk=t
    def soft():
        r0=stack[0][0][1]; r1=stack[1][0][1]
        a('v_cvt_pk_bf16_f32 v60, v%d, v%d'%(r0,r1)); a('v_lshlrev_b32 v8, 16, v60'); a('v_and_b32 v9, 0xffff0000, v60')
        a('v_mov_b32 v10, v8'); a('v_mov_b32 v11, v9'); a('v_permlane32_swap_b32 v10, v11'); a('v_max_f32 v10, v10, v11'); red32('v_max_f32',10,11)
        a('v_readlane_b32 s76, v10, 0'); a('v_readlane_b32 s77, v10, 32')
        for h in range(2):
            a('v_subrev_f32 v%d, s%d, v%d'%(8+h,76+h,8+h)); a('v_mul_f32 v%d, s66, v%d'%(8+h,8+h)); a('v_exp_f32 v%d, v%d'%(8+h,8+h))
        a('v_cvt_pk_bf16_f32 v60, v8, v9')
        a('v_lshlrev_b32 v13, 8, v3'); a('v_lshl_add_u32 v13, v23, 7, v13'); a('v_lshl_add_u32 v14, v5, 1, v13')
        a('ds_write_b16 v14, v60 offset:%d'%PP); a('ds_write_b16_d16_hi v14, v60 offset:%d'%(PP+64))
        for k in range(8): a('ds_read_b128 v[%d:%d], v13 offset:%d'%(96+4*k,99+4*k,PP+16*k))
        a('v_permlane32_swap_b32 v8, v9'); a('v_add_f32 v11, v8, v9'); red32('v_add_f32',11,9)
        a('v_lshlrev_b32 v12, 3, v3'); a('v_lshl_add_u32 v12, v23, 6, v12'); a('ds_write_b64 v12, v[10:11] offset:%d'%MX); lg(); stamp(3)
    W(tk,soft)
    def vpair(i):
        def f():
            wait(ms[i+1]); j=(i-32)//2; A=slot(i); B=slot(i+1)
            for k in range(4):
                a('v_perm_b32 v%d, v%d, v%d, s64'%(80+2*k,B+k,A+k)); a('v_perm_b32 v%d, v%d, v%d, s65'%(81+2*k,B+k,A+k))
            for d in range(2 if 'v' in drop else 8):
                for h in range(2): a('v_dot2_f32_bf16 v%d, v%d, v%d, %s'%(64+8*h+d,80+d,96+16*h+j,'0' if j==0 else 'v%d'%(64+8*h+d)))
        return f
    for i in range(32,64,2):
        t=i+1
        while t<64 and t-dep(t)<i+1: t+=1
        t=max(tk+(i-32)//(2*vpt),t); assert t<i+16 or i+16>63; W(t,vpair(i))
        if i==38: tv7=t
    def mlx(n,pub):
        def f():
            if pub: a('s_cmp_lg_u32 s52, %d'%wm_); a('s_cbranch_scc1 L_ml')
            a('v_lshlrev_b32 v13, 3, v19'); a('v_lshl_add_u32 v13, v23, 6, v13'); a('s_mov_b32 s61, 100000')
            a(n+':'); a('ds_read_b64 v[92:93], v13 offset:%d'%MX); lg()
            a('v_cmp_eq_u32 vcc, -1, v93'); a('s_cbranch_vccz %sd'%n); a('s_sub_u32 s61, s61, 1'); a('s_cbranch_scc0 '+n); a(n+'d:')
            a('v_mov_b32 v88, v92')
            for c in (Q1,Q2,HM): dpp('v_max_f32',88,88,88,c)
            if not pub:
                a('v_sub_f32 v90, v10, v88'); a('v_mul_f32 v90, s66, v90'); a('v_exp_f32 v90, v90'); a('v_mov_b32 v91, v90'); return
            a('v_sub_f32 v92, v92, v88'); a('v_mul_f32 v92, s66, v92'); a('v_exp_f32 v92, v92'); a('v_mul_f32 v89, v92, v93')
            for c in (Q1,Q2,HM): dpp('v_add_f32',89,89,89,c)
            a('v_lshlrev_b32 v13, 4, v23'); a('v_mov_b32 v90, v4'); a('v_mov_b32 v91, v4')
            a('s_mov_b32 exec_lo, 1'); a('s_mov_b32 exec_hi, 1'); a('buffer_store_dwordx4 v[88:91], v13, s[48:51], s62 offen offset:2048 sc1'); a('s_mov_b64 exec, -1'); a('L_ml:')
        return f
    if 'm' not in drop: W(tk+t_m,mlx('L_m1',1))
    W(63,mlx('L_m2',0))
    t_wd=max(t_wd,tk+1); t_wo=max(t_wo,t_wd+1)
    def wd_issue():
        a('v_mul_u32_u24 v56, 3584, v3'); a('v_lshlrev_b32 v57, 4, v1'); a('v_cmp_gt_u32 vcc, 56, v1'); a('v_mov_b32 v58, 0x40000000'); a('v_cndmask_b32 v57, v58, v57, vcc')
        a('v_lshl_add_u32 v58, v56, 1, v57'); a('v_add_u32 v59, 3584, v58'); a('v_add_u32 v57, v56, v57')
    W(t_wd,wd_issue)
    def wd_i(r):
        def f(): st['wd']=vm('buffer_load_dwordx4 v[%d:%d], v57, s[32:35], 0 offen offset:%d %s'%(232+4*r,235+4*r,896*r,ont))
        return f
    for r in range(4): W(t_wd+r*wsp,wd_i(r))
    t_wd+=3*wsp; t_wo=max(t_wo,t_wd+1)
    def wd_comp():
        a('v_lshlrev_b32 v45, 4, v19'); a('v_lshl_add_u32 v45, v3, 7, v45')
        a('ds_read_b128 v[24:27], v45 offset:%d'%GU); lg()
        for c in (Q1,Q2):
            for d in range(4): dpp('v_add_f32',24+d,24+d,24+d,c)
        for d in range(4): a('v_mov_b32_dpp v%d, v%d row_half_mirror row_mask:0xf bank_mask:0xf'%(28+d,24+d))
        for d in range(8): rb(24+d)
        for d in range(4): a('v_mul_f32 v%d, 0xbfb8aa3b, v%d'%(32+d,24+d))
        for d in range(4): a('v_exp_f32 v%d, v%d'%(32+d,32+d))
        for d in range(4): a('v_add_f32 v%d, 1.0, v%d'%(32+d,32+d))
        for d in range(4): a('v_rcp_f32 v%d, v%d'%(32+d,32+d))
        for d in range(4): a('v_mul_f32 v%d, v%d, v%d'%(24+d,24+d,32+d))
        for d in range(4): rb(24+d)
        for d in range(4): a('v_mul_f32 v%d, v%d, v%d'%(24+d,24+d,28+d))
        a('v_cvt_pk_bf16_f32 v24, v24, v25'); a('v_cvt_pk_bf16_f32 v25, v26, v27')
        a('v_readlane_b32 s76, v24, 0'); a('v_readlane_b32 s77, v25, 0')
        wait(st['wd'])
        for p in range(2):
            for k in range(4):
                A=232+8*p+k; a('v_perm_b32 v%d, v%d, v%d, s64'%(28+2*k,A+4,A)); a('v_perm_b32 v%d, v%d, v%d, s65'%(29+2*k,A+4,A))
            for d in range(8): a('v_dot2_f32_bf16 v%d, v%d, s%d, %s'%(48+d,28+d,76+p,'0' if p==0 else 'v%d'%(48+d)))
    twc=max(t_wd+dep(t_wd)+1,tv7+1); W(twc,wd_comp); assert twc<t_ml and tk+t_m<t_ml
    def wo_issue(p):
        def f():
            for r in (p,): st['wo']=vm('buffer_load_dwordx4 v[%d:%d], v%d, s[20:23], 0 offen offset:%d %s'%(200+4*r,203+4*r,58+(r>>2),896*(r&3),ont))
        return f
    def wo_perm():
        wait(st['wo'])
        for p in range(4):
            for k in range(4):
                A=200+8*p+k; a('v_perm_b32 v%d, v%d, v%d, s64'%(192+8*p+2*k,A+4,A)); a('v_perm_b32 v%d, v%d, v%d, s65'%(193+8*p+2*k,A+4,A))
    late = t_wo>=56
    for p in range(8): W(min(63,t_wo+(p if wsp else p&~1)),wo_issue(p))
    if not late: W(min(64,t_wo+7+dep(t_wo+7)),wo_perm)
    ML='buffer_load_dwordx3 v[24:26], v40, s[48:51], s67 offen offset:2048 sc1'
    def ml1():
        a('s_lshl_b32 s67, s3, 15'); a('s_add_u32 s67, s67, %d'%REC1); a('s_lshr_b32 s5, s4, 2'); a('s_lshl_b32 s5, s5, 4')
        a('v_lshl_add_u32 v40, v19, 12, s5'); st['ml']=vm(ML) if 'm' not in drop else 0
        a('s_lshl_b32 s5, s4, 8'); a('v_lshlrev_b32 v27, 12, v19'); a('v_lshl_add_u32 v27, v16, 2, v27'); a('v_lshl_add_u32 v27, v3, 5, v27'); a('v_add_u32 v27, s5, v27')
        if h1: a('s_lshl_b32 s5, s4, 12'); a('v_lshlrev_b32 v27, 5, v19'); a('v_lshl_add_u32 v27, v16, 2, v27'); a('v_lshl_add_u32 v27, v3, 8, v27'); a('v_add_u32 v27, s5, v27')
        a('v_cmp_eq_u32 vcc, s4, v19'); a('v_mov_b32 v36, 0x40000000'); a('v_cndmask_b32 v27, v27, v36, vcc')
        a('v_and_b32 v36, 3, v16'); a('v_lshlrev_b32 v36, 3, v36'); a('v_lshrrev_b32 v41, v36, v4'); a('v_cndmask_b32 v41, v41, 0, vcc')
        a('v_mul_u32_u24 v37, %d, v19'%WS); a('v_lshrrev_b32 v36, 2, v16'); a('v_mul_u32_u24 v36, %d, v36'%DH); a('v_add_u32 v37, v37, v36')
        a('v_and_b32 v36, 3, v16'); a('v_lshl_add_u32 v37, v36, 2, v37'); a('v_lshl_add_u32 v37, v3, 4, v37'); a('s_lshl_b32 s5, s4, 7'); a('v_add_u32 v37, s5, v37')
        a('v_mul_u32_u24 v28, %d, v3'%WS); a('v_lshl_add_u32 v28, v1, 4, v28')
        a('v_and_b32 v29, 3, v1'); a('v_mul_u32_u24 v29, %d, v29'%(2*WS)); a('v_bfe_u32 v30, v1, 2, 1'); a('v_mul_u32_u24 v30, %d, v30'%DH); a('v_add_u32 v29, v29, v30')
        a('v_lshl_add_u32 v29, v16, 4, v29'); a('v_lshl_add_u32 v29, v3, 7, v29')
        a('v_lshlrev_b32 v30, 2, v0')
        a('s_lshl_b32 s68, s53, 17'); a('s_add_u32 s68, s68, %d'%REC2); a('s_lshl_b32 s5, s55, 7'); a('s_add_u32 s68, s68, s5')
        a('v_lshlrev_b32 v31, 11, v19'); a('v_lshl_add_u32 v31, v16, 4, v31')
        a('s_mul_i32 s5, s53, 896'); a('s_lshl_b32 s7, s55, 6'); a('s_add_u32 s5, s5, s7'); a('v_lshl_add_u32 v32, v16, 3, s5')
        for k in range(1,8): a('s_add_u32 s%d, s68, %d'%(68+k,16384*k))
        if h1:
            a('s_lshl_b32 s5, s4, 5'); a('v_lshl_add_u32 v30, v3, 12, s5'); a('v_lshl_add_u32 v30, v16, 8, v30'); a('v_bfe_u32 v36, v0, 2, 1'); a('v_lshl_add_u32 v30, v36, 4, v30')
            if h1==2: a('v_cmp_eq_u32 vcc, s4, v3'); a('v_mov_b32 v36, 0x40000000'); a('v_cndmask_b32 v30, v30, v36, vcc')
        if lg2:
            a('s_lshl_b32 s63, s53, 17'); a('s_add_u32 s63, s63, %d'%REC2); a('s_lshl_b32 s5, s55, %d'%(10+lg2)); a('s_add_u32 s68, s63, s5')
            a('s_lshl_b32 s5, s55, %d'%(4+lg2)); a('s_add_u32 s63, s63, s5'); a('v_lshlrev_b32 v31, 4, v1')
            a('v_lshrrev_b32 v42, %d, v0'%(2+lg2)); a('v_lshlrev_b32 v42, %d, v42'%(10+lg2)); a('v_bfe_u32 v36, v0, 2, %d'%lg2); a('v_lshl_add_u32 v42, v36, 4, v42')
            a('s_mul_i32 s5, s53, 896'); a('s_lshl_b32 s7, s55, %d'%(3+lg2)); a('s_add_u32 s5, s5, s7'); a('v_and_b32 v36, %d, v1'%((1<<lg2)-1)); a('v_lshl_add_u32 v32, v36, 3, s5')
        vm('buffer_load_dwordx2 v[34:35], v32, s[36:39], 0 offen')
        if pt&1: vm('buffer_load_dword v38, v30, s[48:51], s62 offen sc1')
        if pt&2: vm('buffer_load_dword v39, v30, s[48:51], s63 offen sc1')
        if pt&4: vm('buffer_load_dword v38, v27, s[48:51], s67 offen sc1')
        if pt&8:
            a('s_cmp_lg_u32 s52, 7'); a('s_cbranch_scc1 L_pt'); a('s_cmp_ge_u32 s55, 14'); a('s_cbranch_scc1 L_pt')
            for k in range(8): a('buffer_load_dword v39, v31, s[48:51], s%d offen sc1'%(68+k))
            a('L_pt:')
    def ml2():
        wait(st['ml']); spin('L_mls',[ML],'v_cmp_ne_u32 vcc, s101, v26')
        a('v_mov_b32 v36, v24')
        for c in (Q1,Q2,HM): dpp('v_max_f32',36,36,36,c)
        a('v_sub_f32 v24, v24, v36'); a('v_mul_f32 v24, s66, v24'); a('v_exp_f32 v24, v24'); a('v_mul_f32 v25, v24, v25')
        for c in (Q1,Q2,HM): dpp('v_add_f32',25,25,25,c)
        a('v_rcp_f32 v25, v25'); a('v_mul_f32 v33, v24, v25'); a('v_readlane_b32 s76, v33, s4')
    W(t_ml,ml1)
    def ptouch():
        for bit,wv,sr in ((16,6,63),(32,4,62)):
            if pt&bit and lg2 and wv==6:
                a('s_cmp_lg_u32 s52, 6'); a('s_cbranch_scc1 L_pq6'); a('s_cmp_ge_u32 s55, %d'%(112>>lg2)); a('s_cbranch_scc1 L_pq6'); a('v_lshlrev_b32 v25, %d, v1'%(4+lg2))
                a('s_lshl_b32 s63, s53, 17'); a('s_add_u32 s63, s63, %d'%REC2); a('s_lshl_b32 s5, s55, %d'%(10+lg2)); a('s_add_u32 s63, s63, s5')
                a('buffer_load_dword v24, v25, s[48:51], s63 offen sc1'); a('L_pq6:')
            elif pt&bit:
                a('s_cmp_lg_u32 s52, %d'%wv); a('s_cbranch_scc1 L_pq%d'%wv); a('v_lshlrev_b32 v25, %d, v1'%(6 if (pt&128 and wv==4) else 5))
                a('buffer_load_dword v24, v25, s[48:51], s%d offen %s'%(sr,'' if pt&64 else 'sc1')); a('L_pq%d:'%wv)
    W(31,ptouch)
    for t in range(t0,65):
        if t<64:
            if t-dep(t)>=0: wait(ms[t-dep(t)])
            if asym and asym[0]<=t<asym[1] and (t-asym[0])%asym[3]==0:
                a('s_cmp_lg_u32 s96, 0'); L.append('s_cbranch_scc1 1'); wait(ms[t-dep(t)+asym[2]])
            issue(t)
        if t in prio:
            a('s_cmp_lt_u32 s52, 4'); a('s_cbranch_scc1 L_pr%d'%t); a('s_setprio %d'%prio[t]); a('L_pr%d:'%t)
        for f in work[t]: f()
        if pro==2 and t in tst: stamp(2+tst.index(t),2)
    for t in range(65,70): assert not work[t]
    stamp(4)
    OL='buffer_load_dword v38, v27, s[48:51], s67 offen sc1'
    def xred(base,src,soff,lab):
        a('ds_write_b128 v28, v[%d:%d] offset:%d'%(src,src+3,base)); a('ds_write_b128 v28, v[%d:%d] offset:%d'%(src+4,src+7,base+DH))
        if not lab: st['ol']=vm(OL)
        lg(); a('s_barrier')
        if lab: a('s_cmp_eq_u32 s52, 7'); a('s_cbranch_scc1 '+lab)
        a('ds_read_b128 v[80:83], v29 offset:%d'%base); a('ds_read_b128 v[84:87], v29 offset:%d'%(base+WS))
        if lab: lg()
        else: a('ds_read_b32 v39, v37 offset:%d'%base); a('s_waitcnt lgkmcnt(1)')
        a('v_pk_add_f32 v[80:81], v[80:81], v[84:85]'); a('v_pk_add_f32 v[82:83], v[82:83], v[86:87]')
        for c in (Q1,Q2):
            for d in range(4): dpp('v_add_f32',80+d,80+d,80+d,c)
        tag(80)
        a('s_mov_b32 exec_lo, 0x11111111'); a('s_mov_b32 exec_hi, 0x11111111')
        vm('buffer_store_dwordx4 v[80:83], v%d, s[48:51], %s offen sc1'%(42 if lab and lg2 else 30,soff))
    for d in range(8): a('v_permlane32_swap_b32 v%d, v%d'%(64+d,72+d))
    for d in range(0,8,2): a('v_pk_add_f32 v[%d:%d], v[%d:%d], v[%d:%d]'%(64+d,65+d,64+d,65+d,72+d,73+d))
    for d in range(0,8,2): a('v_pk_mul_f32 v[%d:%d], v[%d:%d], v[90:91]'%(64+d,65+d,64+d,65+d))
    xred(OR,64,'s67' if h1 else 's62',None)
    a('s_mov_b64 exec, -1')
    if late: wo_perm()
    ml2(); lg(); a('v_mul_f32 v24, s76, v39')
    wait(st['ol']); spin('L_os',[OL],'v_cmp_ne_u32_sdwa vcc, v38, v41 src0_sel:BYTE_0 src1_sel:BYTE_0')
    stamp(5)
    a('v_and_b32 v38, 0xffffff00, v38'); a('v_fmac_f32 v24, v38, v33')
    for c in (Q1,Q2,HM): dpp('v_add_f32',24,24,24,c)
    a('v_mov_b32_dpp v25, v24 row_ror:8 row_mask:0xf bank_mask:0xf'); a('v_cvt_pk_bf16_f32 v24, v24, v25')
    for p in range(4): a('v_readlane_b32 s%d, v24, %d'%(76+p,16*p))
    for p in range(4):
        for d in range(8): a('v_dot2_f32_bf16 v%d, v%d, s%d, v%d'%(48+d,192+8*p+d,76+p,48+d))
    xred(OP,48,'s63','L_fin')
    a('s_branch L_done')
    a('L_fin:')
    a('s_cmp_ge_u32 s55, %d'%(112>>lg2 if lg2 else 14)); a('s_cbranch_scc1 L_done')
    def FL(b): return ['buffer_load_dwordx4 v[%d:%d], v31, s[48:51], s%d offen sc1'%(b+4*k,b+3+4*k,68+k) for k in range(8)]
    def lv1(b):
        for k in range(0,16,2): a('v_pk_add_f32 v[%d:%d], v[%d:%d], v[%d:%d]'%(64+k,65+k,b+k,b+1+k,b+16+k,b+17+k))
    if lg2:
        F2=['buffer_load_dwordx4 v[%d:%d], v31, s[48:51], s68 offen offset:%d sc1'%(64+4*k,67+4*k,1024*k) for k in range(1<<lg2)]
        for l in F2: a(l)
        a('s_waitcnt vmcnt(0)'); spin('L_fs',F2,list(range(64,64+(4<<lg2))))
    elif not ns:
        for l in FL(96): a(l)
        a('s_waitcnt vmcnt(0)'); spin('L_fs',FL(96),list(range(96,128))); lv1(96)
    else:
        for i in range(ns):
            for l in FL(96+32*i): a(l)
        a('s_mov_b32 s61, 20000'); a('L_fs:')
        for i in range(ns):
            a('s_waitcnt vmcnt(%d)'%(8*ns-8)); chk(list(range(96+32*i,128+32*i))); a('s_cbranch_vccz L_fd%d'%i)
            for l in FL(96+32*i): a(l)
        a('s_sub_u32 s61, s61, 1'); a('s_cbranch_scc0 L_fs'); a('s_waitcnt vmcnt(0)')
        for i in range(ns):
            a('L_fd%d:'%i); lv1(96+32*i)
            if i<ns-1: a('s_branch L_fe')
        a('L_fe:')
    for s in ((4,) if lg2==1 else (8,4)):
        for k in range(0,s,2): a('v_pk_add_f32 v[%d:%d], v[%d:%d], v[%d:%d]'%(64+k,65+k,64+k,65+k,64+s+k,65+s+k))
    a('v_lshlrev_b32 v36, 16, v34'); a('v_and_b32 v37, 0xffff0000, v34'); a('v_lshlrev_b32 v38, 16, v35'); a('v_and_b32 v39, 0xffff0000, v35')
    for c in ((Q1,Q2,HM) if not lg2 else (Q2,'row_ror:4','row_ror:8')[lg2-1:]):
        for d in range(4): dpp('v_add_f32',64+d,64+d,64+d,c)
    if lg2:
        for op in ('v_permlane16_swap_b32','v_permlane32_swap_b32'):
            for d in range(4): a('v_mov_b32 v%d, v%d'%(68+d,64+d))
            for d in range(4): a('%s v%d, v%d'%(op,64+d,68+d))
            a('v_pk_add_f32 v[64:65], v[64:65], v[68:69]'); a('v_pk_add_f32 v[66:67], v[66:67], v[70:71]')
    a('v_pk_add_f32 v[64:65], v[64:65], v[36:37]'); a('v_pk_add_f32 v[66:67], v[66:67], v[38:39]')
    a('v_cvt_pk_bf16_f32 v64, v64, v65'); a('v_cvt_pk_bf16_f32 v65, v66, v67')
    if lg2: a('s_mov_b64 exec, %d'%((1<<(1<<lg2))-1))
    else: a('s_mov_b32 exec_lo, 0x01010101'); a('s_mov_b32 exec_hi, 0x01010101')
    a('buffer_store_dwordx2 v[64:65], v32, s[40:43], 0 offen')
    a('s_cmp_lg_u32 s2, 0'); a('s_cbranch_scc1 L_done'); a('s_mov_b64 exec, 1'); a('s_mov_b32 s5, %d'%CN); a('buffer_store_dword v4, off, s[48:51], s5 sc1')
    a('L_done:')
    if stamps:
        stamp(6); a('s_getreg_b32 s97, hwreg(HW_REG_XCC_ID)'); srd(8,86,'0x20000000',1<<20)
        a('s_lshl_b32 s5, s2, 3'); a('s_add_u32 s5, s5, s52'); a('s_lshl_b32 s5, s5, 5'); a('s_mov_b64 exec, 1')
        for k in range(8): a('v_mov_b32 v%d, s%d'%(8+k,90+k if k!=6 else 100))
        a('buffer_store_dwordx4 v[8:11], off, s[8:11], s5'); a('buffer_store_dwordx4 v[12:15], off, s[8:11], s5 offset:16')
    a('L_end:')
    ref=open('parallel_sum__sliding_block_cached__swiglu_ffn__decode.s.ref').read().split('\n')
    i0=[i for i,l in enumerate(ref) if l.startswith(KN+':')][0]; i1=[i for i,l in enumerate(ref) if l.startswith('s_endpgm')][0]
    hdr=['; @launch grid=(256,1,1) block=(512,1,1) lds=%d'%LDS if l.startswith('; @launch') else l for l in ref[:i0+1]]
    body=[l if l.endswith(':') else '    '+l for l in pad(L)]
    return '\n'.join(hdr+body+ref[i1:])
if __name__=='__main__':
    from asm import build
    name=sys.argv[1]; kw=eval('dict(%s)'%(sys.argv[2] if len(sys.argv)>2 else ''))
    open(name+'.s','w').write(gen(**kw)); build(name+'.s',name+'.co')
```

```python
import sys
sys.path.insert(0,'exp'); sys.path.insert(0,'k')
from hz import pad
KN="parallel_sum__sliding_block_cached__swiglu_ffn__decode_kernel"
XN=0; QP=12288; QB=6144; GU=7168; MX=9216; LS=9280; PP=9472; OR=12288; WS=2320; DH=1152; OP=OR+8*WS; LDS=OP+8*WS
GP=0x40000; CN=0x80000; REC1=0x100000; REC2=0x200000
def gen(ss=2048, osc='', h1=0, lg2=0, ns=0, pt=0, lay=0, rnd=1, depth=4, burst=5, nt='nt', wnt='nt', stamps=False, t_gu=8, t_poll=20, t_wd=34, t_wo=40, t_ml=58, pf=1, gap=50, t_g=5, cx=0, asym=(8,56,1,1), wg_=1, wm_=5, dsch=None, wsp=0, vpt=3, prio={}, arr=0, nsh=32, shard=0, t_q=4, t_m=3, tst=(12,20,25,29), gmin=0, hold=0, d1=8, t_up=56, slope=1, kpt=2, ont='', drop='', bar0=1, pro=0, xnt='', qnt='nt', t_ar=2):
    CN,REC2=(0x41e00,0x80000) if lay else (0x80000,0x200000)
    L=[]; auto=[0]; acc=[0]; nxt=[burst]
    def a(x):
        L.append(x)
        if auto[0] and x.startswith('v_'):
            acc[0]+=1
            if acc[0]>=auto[0]: acc[0]=0; issue(nxt[0]); nxt[0]+=1
    cnt=[0]
    def vm(s): a(s); cnt[0]+=1; return cnt[0]
    def wait(m): a('s_waitcnt vmcnt(%d)'%min(63,cnt[0]-m))
    def lg(): a('s_waitcnt lgkmcnt(0)')
    def stamp(k,p=0):
        if stamps and (p==pro or k in (1,6)): a('s_memrealtime s[88:89]'); lg(); a('s_mov_b32 s%d, s88'%(90+k if k<6 else 100))
    def srd(d,b,off,n):
        if off is None: a('s_mov_b32 s%d, s%d'%(d,b)); a('s_mov_b32 s%d, s%d'%(d+1,b+1))
        else: a('s_add_u32 s%d, s%d, %s'%(d,b,off)); a('s_addc_u32 s%d, s%d, 0'%(d+1,b+1))
        a('s_mov_b32 s%d, %s'%(d+2,n)); a('s_mov_b32 s%d, 0x20000'%(d+3))
    def rb(v): a('v_cvt_pk_bf16_f32 v%d, v%d, v%d'%(v,v,v)); a('v_and_b32 v%d, 0xffff0000, v%d'%(v,v))
    def dpp(op,d,s0,s1,ctl,bank=0xf): a('%s_dpp v%d, v%d, v%d %s row_mask:0xf bank_mask:0x%x'%(op,d,s0,s1,ctl,bank))
    Q1='quad_perm:[1,0,3,2]'; Q2='quad_perm:[2,3,0,1]'; HM='row_half_mirror'
    def merge(lv,x,y,t):
        if lv==0: a('v_permlane16_swap_b32 v%d, v%d'%(x,y)); a('v_add_f32 v%d, v%d, v%d'%(x,x,y))
        elif lv==1: dpp('v_add_f32',x,x,x,'row_ror:8',0x3); dpp('v_add_f32',x,y,y,'row_ror:8',0xc)
        elif lv==2: dpp('v_add_f32',x,x,x,HM,0x5); dpp('v_add_f32',x,y,y,HM,0xa)
        else:
            m='s[56:57]' if lv==3 else 's[58:59]'
            a('v_cndmask_b32 v%d, v%d, v%d, %s'%(t,y,x,m)); a('v_cndmask_b32 v%d, v%d, v%d, %s'%(x,x,y,m))
            dpp('v_add_f32',x,t,x,Q2 if lv==3 else Q1)
    def red32(op,x,t):
        for c in ('row_ror:8','row_ror:4','row_ror:2','row_ror:1'): dpp(op,x,x,x,c)
        a('v_mov_b32 v%d, v%d'%(t,x)); a('v_permlane16_swap_b32 v%d, v%d'%(x,t)); a('%s v%d, v%d, v%d'%(op,x,x,t))
    def spin(name,load,rs):
        a('s_mov_b32 s61, 20000')
        a(name+'_c:')
        chk(rs); a('s_cbranch_vccz %s_d'%name)
        a('s_sub_u32 s61, s61, 1'); a('s_cbranch_scc1 %s_d'%name)
        for l in load: a(l)
        a('s_waitcnt vmcnt(0)'); a('s_branch %s_c'%name)
        a(name+'_d:')
    def chk(rs):
        if isinstance(rs,str): a(rs); return
        for i,r in enumerate(rs): a('v_xor_b32 v%d, s%d, v%d'%(r,44+(i&3),r))
        for i in range(0,len(rs),2):
            k=(i>>1)&3
            if i<8: a('v_or_b32 v%d, v%d, v%d'%(60+k,rs[i],rs[i+1]))
            else: a('v_or3_b32 v%d, v%d, v%d, v%d'%(60+k,60+k,rs[i],rs[i+1]))
        a('v_or3_b32 v60, v60, v61, v62'); a('v_or_b32 v60, v60, v63'); a('v_and_b32 v60, 0xff, v60'); a('v_cmp_ne_u32 vcc, 0, v60')
    def tag(r,rn=0):
        if rn:
            for k in range(4): a('v_add_u32 v%d, 0x80, v%d'%(r+k,r+k))
        for k in range(4): a('v_perm_b32 v%d, v%d, v4, s%d'%(r+k,r+k,28+k))
    a('s_cmp_ge_u32 s2, 256'); a('s_cbranch_scc1 L_end')
    a('s_load_dwordx16 s[64:79], s[0:1], 0'); a('s_load_dwordx8 s[80:87], s[0:1], 64')
    if stamps: a('s_memrealtime s[88:89]')
    if pf:
        a('s_getpc_b64 s[98:99]'); a('v_lshlrev_b32 v42, 6, v0'); a('v_min_u32 v42, L_end-%s-64, v42'%KN); vm('global_load_dword v43, v42, s[98:99]')
    a('v_and_b32 v1, 63, v0'); a('v_lshrrev_b32 v3, 6, v0'); a('v_readfirstlane_b32 s52, v3'); a('v_lshlrev_b32 v2, 4, v0')
    a('s_lshr_b32 s3, s2, 3'); a('s_and_b32 s4, s2, 7')
    a('s_lshl_b32 s5, s3, 23'); a('s_xor_b32 s6, s4, %d'%cx); a('s_lshl_b32 s6, s6, 18'); a('s_add_u32 s5, s5, s6'); a('s_add_u32 s5, s5, %d'%(12288*512))
    a('s_lshr_b32 s53, s2, 6'); a('s_and_b32 s55, s2, 63')
    a('s_mul_i32 s6, s53, %d'%(112*8192)); a('s_lshl_b32 s7, s55, 7'); a('s_add_u32 s6, s6, s7'); a('s_sub_u32 s7, %d, s7'%(112*8192))
    a('s_cmp_ge_u32 s55, 28'); a('s_cselect_b32 s56, 28, 0'); a('s_cselect_b32 s57, 4, 0'); a('s_sub_u32 s56, s55, s56')
    a('s_mul_i32 s58, s53, %d'%(112*3584)); a('s_lshl_b32 s59, s56, 7'); a('s_add_u32 s58, s58, s59'); a('s_sub_u32 s59, %d, s59'%(112*3584))
    a('s_cmp_ge_u32 s55, 56'); a('s_cselect_b32 s59, 0, s59')
    a('v_mul_u32_u24 v4, 896, v3'); a('v_lshl_add_u32 v4, v1, 4, v4')
    a('v_lshrrev_b32 v16, 3, v1'); a('v_and_b32 v19, 7, v1'); a('v_lshl_add_u32 v6, v3, 4, v16')
    a('v_lshlrev_b32 v22, 13, v6'); a('v_lshl_add_u32 v22, v19, 4, v22')
    a('v_mul_u32_u24 v17, 3584, v6'); a('v_lshl_add_u32 v17, v19, 4, v17')
    a('s_mov_b32 s54, 0x10000'); a('s_mov_b32 s61, 28672'); a('s_mov_b32 s60, 0'); a('s_cmp_ge_u32 s55, 28')
    lg()
    if stamps: a('s_mov_b32 s90, s88')
    a('s_cselect_b32 s76, s78, s76'); a('s_cselect_b32 s77, s79, s77')
    a('s_load_dword s101, s[86:87], %d'%CN)
    srd(36,64,None,3584); srd(24,76,'s58',0 if 'g' in drop else 's59'); srd(16,70,'s6',0 if 'q' in drop else 's7'); srd(8,66,'s5',1<<18); srd(48,86,None,0x400000)
    mx=vm('buffer_load_dwordx4 v[96:99], v4, s[36:39], 0 offen '+xnt)
    vm('buffer_load_dwordx4 v[52:55], v22, s[16:19], 0 offen '+qnt)
    vm('buffer_load_dwordx4 v[56:59], v22, s[16:19], s54 offen '+qnt)
    vm('buffer_load_dwordx4 v[44:47], v17, s[24:27], 0 offen '+wnt)
    mq=vm('buffer_load_dwordx4 v[48:51], v17, s[24:27], s61 offen '+wnt)
    a('s_lshl_b32 s62, s2, 12'); a('s_add_u32 s62, s62, %d'%REC1)
    a('s_lshl_b32 s63, s2, 11'); a('s_add_u32 s63, s63, %d'%REC2)
    a('v_mov_b32 v60, -1'); a('v_lshlrev_b32 v61, 2, v1'); a('ds_write_b32 v61, v60 offset:%d'%MX)
    mclr=cnt[0]
    ms={}
    def slot(t): return 128+4*t if t<32 else (24+4*(t-32) if t<40 else 128+4*((t-40)%16))
    def issue(t):
        if t==32: a('s_mov_b32 s60, 0')
        ms[t]=vm('buffer_load_dwordx4 v[%d:%d], v2, s[%d:%d], s60 offen %s'%(slot(t),slot(t)+3,8 if t<32 else 12,11 if t<32 else 15,nt))
        a('s_add_u32 s60, s60, 0x2000')
    if bar0: a('s_barrier')
    for t in range(burst): issue(t)
    srd(12,68,'s5',1<<18); srd(40,82,None,3584)
    a('s_mul_i32 s5, s55, %d'%(28*896)); srd(32,80,'s5',0 if 'o' in drop else 28*896)
    a('s_mul_i32 s5, s55, %d'%(64*896)); srd(20,72,'s5',0 if 'o' in drop else 64*896)
    a('s_lshl_b32 s6, s53, 16'); a('s_lshl_b32 s5, s55, 8'); a('s_add_u32 s6, s6, s5')
    a('s_add_u32 s7, s57, s53'); a('s_lshl_b32 s7, s7, 15'); a('s_lshl_b32 s5, s56, 8'); a('s_add_u32 s7, s7, s5'); a('s_add_u32 s7, s7, %d'%GP)
    a('s_mov_b32 s56, 0xcccccccc'); a('s_mov_b32 s57, s56'); a('s_mov_b32 s58, 0xaaaaaaaa'); a('s_mov_b32 s59, s58')
    a('s_mov_b32 s64, 0x05040100'); a('s_mov_b32 s65, 0x07060302'); a('s_mov_b32 s66, 0x3db8aa3b')
    a('s_getreg_b32 s96, hwreg(HW_REG_XCC_ID)'); a('s_and_b32 s96, s96, 1')
    a('s_mul_i32 s5, s53, 224'); a('v_lshl_add_u32 v6, v6, 1, s5'); a('v_lshrrev_b32 v23, 5, v1')
    a('v_and_b32 v5, 31, v1'); a('v_bfrev_b32 v5, v5'); a('v_lshrrev_b32 v5, 27, v5')
    a('v_lshrrev_b32 v20, 4, v1'); a('v_lshlrev_b32 v21, 8, v20'); a('v_lshl_add_u32 v21, v19, 5, v21'); a('v_and_b32 v18, 8, v1'); a('v_lshl_add_u32 v21, v18, 1, v21'); a('v_lshl_add_u32 v21, v3, 10, v21')
    stamp(2,1)
    a('s_cmp_ge_u32 s52, 4'); a('s_cbranch_scc1 L_noln')
    def red64(x,t):
        a('v_mov_b32 v%d, v%d'%(t,x)); a('v_permlane32_swap_b32 v%d, v%d'%(x,t)); a('v_add_f32 v%d, v%d, v%d'%(x,x,t)); red32('v_add_f32',x,t)
    a('v_mov_b32 v60, 0'); a('v_mov_b32 v62, 0'); a('s_mov_b32 exec_hi, 0x00ffffff')
    wait(mx)
    for k in range(4):
        a('v_lshlrev_b32 v%d, 16, v%d'%(24+2*k,96+k)); a('v_and_b32 v%d, 0xffff0000, v%d'%(25+2*k,96+k))
    a('v_pk_add_f32 v[32:33], v[24:25], v[26:27]'); a('v_pk_add_f32 v[34:35], v[28:29], v[30:31]'); a('v_pk_add_f32 v[32:33], v[32:33], v[34:35]')
    a('v_add_f32 v60, v32, v33'); a('s_mov_b32 exec_hi, -1'); red64(60,61)
    a('v_mul_f32 v60, 0xbb124925, v60'); a('v_mov_b32 v61, v60'); a('s_mov_b32 exec_hi, 0x00ffffff')
    for k in range(4): a('v_pk_add_f32 v[%d:%d], v[%d:%d], v[60:61]'%(32+2*k,33+2*k,24+2*k,25+2*k))
    a('v_pk_mul_f32 v[32:33], v[32:33], v[32:33]'); a('v_pk_mul_f32 v[34:35], v[34:35], v[34:35]')
    a('v_pk_fma_f32 v[32:33], v[36:37], v[36:37], v[32:33]'); a('v_pk_fma_f32 v[34:35], v[38:39], v[38:39], v[34:35]'); a('v_pk_add_f32 v[32:33], v[32:33], v[34:35]')
    a('v_add_f32 v62, v32, v33'); a('s_mov_b32 exec_hi, -1'); red64(62,63)
    a('v_mul_f32 v62, 0x3b124925, v62'); rb(62); rb(60)
    a('v_add_f32 v62, 0x3727c5ac, v62'); rb(62); a('v_sqrt_f32 v62, v62'); rb(62); a('v_rcp_f32 v63, v62')
    for k in range(8): a('v_add_f32 v%d, v60, v%d'%(24+k,24+k))
    for k in range(4): a('v_cvt_pk_bf16_f32 v%d, v%d, v%d'%(96+k,24+2*k,25+2*k))
    for k in range(4):
        a('v_lshlrev_b32 v%d, 16, v%d'%(24+2*k,96+k)); a('v_and_b32 v%d, 0xffff0000, v%d'%(25+2*k,96+k))
    for k in range(8): a('v_mul_f32 v%d, v63, v%d'%(32+k,24+k))
    for k in range(8): a('v_fma_f32 v%d, -v%d, v62, v%d'%(24+k,32+k,24+k))
    for k in range(8): a('v_fmac_f32 v%d, v%d, v63'%(32+k,24+k))
    for k in range(4): a('v_cvt_pk_bf16_f32 v%d, v%d, v%d'%(96+k,32+2*k,33+2*k))
    a('s_mov_b32 exec_hi, 0x00ffffff'); a('ds_write_b128 v4, v[96:99] offset:%d'%XN); a('s_mov_b32 exec_hi, -1'); lg()
    a('L_noln:')
    a('s_barrier'); stamp(3,1)
    auto[0]=gap
    for b in range(4):
        a('ds_read_u16 v%d, v6 offset:%d'%(104+b,XN+896*b)); a('ds_read_u16 v%d, v6 offset:%d'%(108+b,XN+896*b+16))
    stamp(4,1); wait(mq); stamp(5,1)
    lg()
    for b in range(4): a('v_lshl_or_b32 v%d, v%d, 16, v%d'%(104+b,108+b,104+b))
    for m,A in enumerate((52,44)):
        for k in range(4):
            a('v_perm_b32 v%d, v%d, v%d, s64'%(96+2*k,A+4+k,A+k)); a('v_perm_b32 v%d, v%d, v%d, s65'%(97+2*k,A+4+k,A+k))
        for b in (0,2,1,3):
            for c in range(8): a('v_dot2_f32_bf16 v%d, v%d, v%d, 0'%(64+8*b+c,96+c,104+b))
        for i in range(16): a('v_permlane32_swap_b32 v%d, v%d'%(64+i,80+i))
        for i in range(0,16,2): a('v_pk_add_f32 v[%d:%d], v[%d:%d], v[%d:%d]'%(64+i,65+i,64+i,65+i,80+i,81+i))
        for i in range(8): a('v_permlane16_swap_b32 v%d, v%d'%(64+i,72+i))
        for i in range(0,8,2): a('v_pk_add_f32 v[%d:%d], v[%d:%d], v[%d:%d]'%(64+i,65+i,64+i,65+i,72+i,73+i))
        for i in range(4): dpp('v_add_f32',112+4*m+i,64+i,64+i,'row_ror:8',0x3)
        for i in range(4): dpp('v_add_f32',112+4*m+i,68+i,68+i,'row_ror:8',0xc)
        a('ds_write_b128 v21, v[%d:%d] offset:%d'%(112+4*m,115+4*m,QP+8192*m))
    auto[0]=0
    a('s_add_u32 s101, s101, 0x01010101'); a('v_mov_b32 v4, s101')
    for k in range(4): a('s_bfe_u32 s%d, s101, 0x%x'%(44+k,0x80000+8*k)); a('s_mov_b32 s%d, 0x%08x'%(28+k,0x07060500+k))
    lg(); a('s_barrier')
    a('s_cmp_lg_u32 s52, %d'%(9 if 's' in drop else 0)); a('s_cbranch_scc1 L_noq')
    for m in range(2):
        for k in range(7): a('ds_read_b128 v[%d:%d], v2 offset:%d'%(64+28*m+4*k,67+28*m+4*k,QP+8192*m+1024*k))
    a('v_and_b32 v21, 15, v1'); a('v_lshlrev_b32 v21, 4, v21'); a('v_lshl_add_u32 v22, v20, 14, v21'); a('v_lshl_add_u32 v21, v20, 13, v21')
    for m in range(2):
        a('s_waitcnt lgkmcnt(%d)'%(7-7*m)); B=64+28*m
        for x,y in ((0,1),(2,3),(4,5),(0,2),(4,6),(0,4)):
            for e in (0,2): a('v_pk_add_f32 v[%d:%d], v[%d:%d], v[%d:%d]'%(B+4*x+e,B+4*x+e+1,B+4*x+e,B+4*x+e+1,B+4*y+e,B+4*y+e+1))
        tag(B,rnd)
        if m==0: a('buffer_store_dwordx4 v[64:67], v22, s[48:51], s6 offen sc1')
        else:
            a('s_cmp_ge_u32 s55, 56'); a('s_cbranch_scc1 L_noq'); a('buffer_store_dwordx4 v[92:95], v21, s[48:51], s7 offen sc1')
    a('L_noq:'); mst=cnt[0]; t0=nxt[0]
    stamp(1)
    work={t:[] for t in range(burst,70)}
    st={}
    def W(t,f): work[t].append(f)
    def dep(t): return [d for (x,d) in dsch if t>=x][-1] if dsch else min(d1,depth+max(0,(t-t_up)//slope))
    GL=[]
    for k in range(4):
        for h in range(2): GL.append('buffer_load_dwordx4 v[%d:%d], v22, s[48:51], s%d offen offset:%d sc1'%(64+8*k+4*h,67+8*k+4*h,68+k,1024*h))
    GL.append('buffer_load_dwordx4 v[8:11], v21, s[48:51], s72 offen sc1')
    def poll2():
        a('s_cmp_lg_u32 s52, %d'%wg_); a('s_cbranch_scc1 L_p2')
        a('s_lshl_b32 s68, s3, 11'); a('v_lshlrev_b32 v22, 4, v1')
        for k in range(1,4): a('s_add_u32 s%d, s68, %d'%(68+k,0x10000*k))
        a('s_lshl_b32 s5, s53, 13'); a('s_mul_i32 s7, s55, 112'); a('s_add_u32 s5, s5, s7'); a('s_add_u32 s72, s5, %d'%GP)
        a('v_min_u32 v21, 6, v16'); a('v_lshlrev_b32 v21, 4, v21'); a('v_lshl_add_u32 v21, v19, 15, v21')
        for l in GL: a(l)
        a('L_p2:'); st['p']=cnt[0]
    def poll3():
        a('s_cmp_lg_u32 s52, %d'%wg_); a('s_cbranch_scc1 L_p3'); wait(st['p'])
        if 'p' not in drop: spin('L_gs',GL,list(range(64,96))+[8,9,10,11])
        for x,y in ((0,1),(2,3),(0,2)):
            for e in (0,2,4,6): a('v_pk_add_f32 v[%d:%d], v[%d:%d], v[%d:%d]'%(64+8*x+e,65+8*x+e,64+8*x+e,65+8*x+e,64+8*y+e,65+8*y+e))
        for e in range(4): a('v_cvt_pk_bf16_f32 v%d, v%d, v%d'%(64+e,64+2*e,65+2*e))
        a('v_lshlrev_b32 v61, 3, v1'); a('ds_write_b64 v61, v[64:65] offset:%d'%QB); a('ds_write_b64 v61, v[66:67] offset:%d'%(QB+512))
        a('ds_write_b128 v22, v[8:11] offset:%d'%GU); a('v_mov_b32 v61, 0'); a('ds_write_b32 v61, v61 offset:%d'%(MX+128)); a('L_p3:')
    def poll4():
        a('v_and_b32 v60, 31, v1'); a('v_lshlrev_b32 v60, 4, v60'); a('v_mov_b32 v61, 0'); a('s_mov_b32 s61, 100000')
        a('L_p4:'); a('ds_read_b32 v7, v61 offset:%d'%(MX+128))
        a('ds_read_b128 v[8:11], v60 offset:%d'%QB); a('ds_read_b128 v[12:15], v60 offset:%d'%(QB+512)); lg()
        a('v_cmp_eq_u32 vcc, -1, v7'); a('s_cbranch_vccz L_p4d'); a('s_sub_u32 s61, s61, 1'); a('s_cbranch_scc0 L_p4'); a('L_p4d:'); stamp(2)
    st['p']=0
    if 'h' not in drop: W(t_poll,poll2)
    W(t_poll+t_g,poll3); tq=t_poll+t_g+t_q; W(tq,poll4)
    stack=[[],[]]; pool=list(range(64,96))
    def kpair(i):
        def f():
            wait(ms[i+1])
            r=[[pool.pop(0),pool.pop(0)] for h in range(2)]
            for k in range(1 if 'k' in drop else 4):
                for e in range(2):
                    for h in range(2):
                        a('v_dot2_f32_bf16 v%d, v%d, v%d, %s'%(r[h][e],slot(i+e)+k,8+4*h+k,'0' if k==0 else 'v%d'%r[h][e]))
            for h in range(2):
                merge(0,r[h][0],r[h][1],60); pool.append(r[h][1]); stack[h].append((1,r[h][0]))
            while len(stack[0])>1 and stack[0][-1][0]==stack[0][-2][0]:
                for h in range(2):
                    lv,y=stack[h].pop(); _,x=stack[h].pop(); merge(lv,x,y,60+h); pool.append(y); stack[h].append((lv+1,x))
        return f
    t=tq; n=0
    for i in range(0,32,2):
        while i+1>t-dep(t) or n>=kpt: t+=1; n=0
        W(t,kpair(i)); n+=1
        if i<16: assert t<40+i
    tk=t
    def soft():
        r0=stack[0][0][1]; r1=stack[1][0][1]
        a('v_cvt_pk_bf16_f32 v60, v%d, v%d'%(r0,r1)); a('v_lshlrev_b32 v8, 16, v60'); a('v_and_b32 v9, 0xffff0000, v60')
        a('v_mov_b32 v10, v8'); a('v_mov_b32 v11, v9'); a('v_permlane32_swap_b32 v10, v11'); a('v_max_f32 v10, v10, v11'); red32('v_max_f32',10,11)
        a('v_readlane_b32 s76, v10, 0'); a('v_readlane_b32 s77, v10, 32')
        for h in range(2):
            a('v_subrev_f32 v%d, s%d, v%d'%(8+h,76+h,8+h)); a('v_mul_f32 v%d, s66, v%d'%(8+h,8+h)); a('v_exp_f32 v%d, v%d'%(8+h,8+h))
        a('v_cvt_pk_bf16_f32 v60, v8, v9')
        a('v_lshlrev_b32 v13, 8, v3'); a('v_lshl_add_u32 v13, v23, 7, v13'); a('v_lshl_add_u32 v14, v5, 1, v13')
        a('ds_write_b16 v14, v60 offset:%d'%PP); a('ds_write_b16_d16_hi v14, v60 offset:%d'%(PP+64))
        for k in range(8): a('ds_read_b128 v[%d:%d], v13 offset:%d'%(96+4*k,99+4*k,PP+16*k))
        a('v_permlane32_swap_b32 v8, v9'); a('v_add_f32 v11, v8, v9'); red32('v_add_f32',11,9)
        a('v_lshlrev_b32 v12, 3, v3'); a('v_lshl_add_u32 v12, v23, 6, v12'); a('ds_write_b64 v12, v[10:11] offset:%d'%MX); lg(); stamp(3)
    W(tk,soft)
    def vpair(i):
        def f():
            wait(ms[i+1]); j=(i-32)//2; A=slot(i); B=slot(i+1)
            for k in range(4):
                a('v_perm_b32 v%d, v%d, v%d, s64'%(80+2*k,B+k,A+k)); a('v_perm_b32 v%d, v%d, v%d, s65'%(81+2*k,B+k,A+k))
            for d in range(2 if 'v' in drop else 8):
                for h in range(2): a('v_dot2_f32_bf16 v%d, v%d, v%d, %s'%(64+8*h+d,80+d,96+16*h+j,'0' if j==0 else 'v%d'%(64+8*h+d)))
        return f
    for i in range(32,64,2):
        t=i+1
        while t<64 and t-dep(t)<i+1: t+=1
        t=max(tk+(i-32)//(2*vpt),t); assert t<i+16 or i+16>63; W(t,vpair(i))
        if i==38: tv7=t
    def mlx(n,pub):
        def f():
            if pub: a('s_cmp_lg_u32 s52, %d'%wm_); a('s_cbranch_scc1 L_ml')
            a('v_lshlrev_b32 v13, 3, v19'); a('v_lshl_add_u32 v13, v23, 6, v13'); a('s_mov_b32 s61, 100000')
            a(n+':'); a('ds_read_b64 v[92:93], v13 offset:%d'%MX); lg()
            a('v_cmp_eq_u32 vcc, -1, v93'); a('s_cbranch_vccz %sd'%n); a('s_sub_u32 s61, s61, 1'); a('s_cbranch_scc0 '+n); a(n+'d:')
            a('v_mov_b32 v88, v92')
            for c in (Q1,Q2,HM): dpp('v_max_f32',88,88,88,c)
            if not pub:
                a('v_sub_f32 v90, v10, v88'); a('v_mul_f32 v90, s66, v90'); a('v_exp_f32 v90, v90'); a('v_mov_b32 v91, v90'); return
            a('v_sub_f32 v92, v92, v88'); a('v_mul_f32 v92, s66, v92'); a('v_exp_f32 v92, v92'); a('v_mul_f32 v89, v92, v93')
            for c in (Q1,Q2,HM): dpp('v_add_f32',89,89,89,c)
            a('v_lshlrev_b32 v13, 4, v23'); a('v_mov_b32 v90, v4'); a('v_mov_b32 v91, v4')
            a('s_mov_b32 exec_lo, 1'); a('s_mov_b32 exec_hi, 1'); a('buffer_store_dwordx4 v[88:91], v13, s[48:51], s62 offen offset:2048 sc1'); a('s_mov_b64 exec, -1'); a('L_ml:')
        return f
    if 'm' not in drop: W(tk+t_m,mlx('L_m1',1))
    W(63,mlx('L_m2',0))
    t_wd=max(t_wd,tk+1); t_wo=max(t_wo,t_wd+1)
    def wd_issue():
        a('v_mul_u32_u24 v56, 3584, v3'); a('v_lshlrev_b32 v57, 4, v1'); a('v_cmp_gt_u32 vcc, 56, v1'); a('v_mov_b32 v58, 0x40000000'); a('v_cndmask_b32 v57, v58, v57, vcc')
        a('v_lshl_add_u32 v58, v56, 1, v57'); a('v_add_u32 v59, 3584, v58'); a('v_add_u32 v57, v56, v57')
    W(t_wd,wd_issue)
    def wd_i(r):
        def f(): st['wd']=vm('buffer_load_dwordx4 v[%d:%d], v57, s[32:35], 0 offen offset:%d %s'%(232+4*r,235+4*r,896*r,ont))
        return f
    for r in range(4): W(t_wd+r*wsp,wd_i(r))
    t_wd+=3*wsp; t_wo=max(t_wo,t_wd+1)
    def wd_comp():
        a('v_lshlrev_b32 v45, 4, v19'); a('v_lshl_add_u32 v45, v3, 7, v45')
        a('ds_read_b128 v[24:27], v45 offset:%d'%GU); lg()
        for c in (Q1,Q2):
            for d in range(4): dpp('v_add_f32',24+d,24+d,24+d,c)
        for d in range(4): a('v_mov_b32_dpp v%d, v%d row_half_mirror row_mask:0xf bank_mask:0xf'%(28+d,24+d))
        for d in range(8): rb(24+d)
        for d in range(4): a('v_mul_f32 v%d, 0xbfb8aa3b, v%d'%(32+d,24+d))
        for d in range(4): a('v_exp_f32 v%d, v%d'%(32+d,32+d))
        for d in range(4): a('v_add_f32 v%d, 1.0, v%d'%(32+d,32+d))
        for d in range(4): a('v_rcp_f32 v%d, v%d'%(32+d,32+d))
        for d in range(4): a('v_mul_f32 v%d, v%d, v%d'%(24+d,24+d,32+d))
        for d in range(4): rb(24+d)
        for d in range(4): a('v_mul_f32 v%d, v%d, v%d'%(24+d,24+d,28+d))
        a('v_cvt_pk_bf16_f32 v24, v24, v25'); a('v_cvt_pk_bf16_f32 v25, v26, v27')
        a('v_readlane_b32 s76, v24, 0'); a('v_readlane_b32 s77, v25, 0')
        wait(st['wd'])
        for p in range(2):
            for k in range(4):
                A=232+8*p+k; a('v_perm_b32 v%d, v%d, v%d, s64'%(28+2*k,A+4,A)); a('v_perm_b32 v%d, v%d, v%d, s65'%(29+2*k,A+4,A))
            for d in range(8): a('v_dot2_f32_bf16 v%d, v%d, s%d, %s'%(48+d,28+d,76+p,'0' if p==0 else 'v%d'%(48+d)))
    twc=max(t_wd+dep(t_wd)+1,tv7+1); W(twc,wd_comp); assert twc<t_ml and tk+t_m<t_ml
    def wo_issue(p):
        def f():
            for r in (p,): st['wo']=vm('buffer_load_dwordx4 v[%d:%d], v%d, s[20:23], 0 offen offset:%d %s'%(200+4*r,203+4*r,58+(r>>2),896*(r&3),ont))
        return f
    def wo_perm():
        wait(st['wo'])
        for p in range(4):
            for k in range(4):
                A=200+8*p+k; a('v_perm_b32 v%d, v%d, v%d, s64'%(192+8*p+2*k,A+4,A)); a('v_perm_b32 v%d, v%d, v%d, s65'%(193+8*p+2*k,A+4,A))
    late = t_wo>=56
    for p in range(8): W(min(63,t_wo+(p if wsp else p&~1)),wo_issue(p))
    if not late: W(min(64,t_wo+7+dep(t_wo+7)),wo_perm)
    ML='buffer_load_dwordx3 v[24:26], v40, s[48:51], s67 offen offset:2048 sc1'
    def ml1():
        a('s_lshl_b32 s67, s3, 15'); a('s_add_u32 s67, s67, %d'%REC1); a('s_lshr_b32 s5, s4, 2'); a('s_lshl_b32 s5, s5, 4')
        a('v_lshl_add_u32 v40, v19, 12, s5'); st['ml']=vm(ML) if 'm' not in drop else 0
        a('s_lshl_b32 s5, s4, 8'); a('v_lshlrev_b32 v27, 12, v19'); a('v_lshl_add_u32 v27, v16, 2, v27'); a('v_lshl_add_u32 v27, v3, 5, v27'); a('v_add_u32 v27, s5, v27')
        if h1: a('s_lshl_b32 s5, s4, 12'); a('v_lshlrev_b32 v27, 5, v19'); a('v_lshl_add_u32 v27, v16, 2, v27'); a('v_lshl_add_u32 v27, v3, 8, v27'); a('v_add_u32 v27, s5, v27')
        a('v_cmp_eq_u32 vcc, s4, v19'); a('v_mov_b32 v36, 0x40000000'); a('v_cndmask_b32 v27, v27, v36, vcc')
        a('v_and_b32 v36, 3, v16'); a('v_lshlrev_b32 v36, 3, v36'); a('v_lshrrev_b32 v41, v36, v4'); a('v_cndmask_b32 v41, v41, 0, vcc')
        a('v_mul_u32_u24 v37, %d, v19'%WS); a('v_lshrrev_b32 v36, 2, v16'); a('v_mul_u32_u24 v36, %d, v36'%DH); a('v_add_u32 v37, v37, v36')
        a('v_and_b32 v36, 3, v16'); a('v_lshl_add_u32 v37, v36, 2, v37'); a('v_lshl_add_u32 v37, v3, 4, v37'); a('s_lshl_b32 s5, s4, 7'); a('v_add_u32 v37, s5, v37')
        a('v_mul_u32_u24 v28, %d, v3'%WS); a('v_lshl_add_u32 v28, v1, 4, v28')
        a('v_and_b32 v29, 3, v1'); a('v_mul_u32_u24 v29, %d, v29'%(2*WS)); a('v_bfe_u32 v30, v1, 2, 1'); a('v_mul_u32_u24 v30, %d, v30'%DH); a('v_add_u32 v29, v29, v30')
        a('v_lshl_add_u32 v29, v16, 4, v29'); a('v_lshl_add_u32 v29, v3, 7, v29')
        a('v_lshlrev_b32 v30, 2, v0')
        a('s_lshl_b32 s68, s53, 17'); a('s_add_u32 s68, s68, %d'%REC2); a('s_lshl_b32 s5, s55, 7'); a('s_add_u32 s68, s68, s5')
        a('v_lshlrev_b32 v31, 11, v19'); a('v_lshl_add_u32 v31, v16, 4, v31')
        a('s_mul_i32 s5, s53, 896'); a('s_lshl_b32 s7, s55, 6'); a('s_add_u32 s5, s5, s7'); a('v_lshl_add_u32 v32, v16, 3, s5')
        for k in range(1,8): a('s_add_u32 s%d, s68, %d'%(68+k,16384*k))
        if h1:
            a('s_lshl_b32 s5, s4, 5'); a('v_lshl_add_u32 v30, v3, 12, s5'); a('v_lshl_add_u32 v30, v16, 8, v30'); a('v_bfe_u32 v36, v0, 2, 1'); a('v_lshl_add_u32 v30, v36, 4, v30')
            if h1==2: a('v_cmp_eq_u32 vcc, s4, v3'); a('v_mov_b32 v36, 0x40000000'); a('v_cndmask_b32 v30, v30, v36, vcc')
        if lg2:
            a('s_lshl_b32 s63, s53, 17'); a('s_add_u32 s63, s63, %d'%REC2); a('s_mul_i32 s5, s55, %d'%(ss<<(lg2-1))); a('s_add_u32 s68, s63, s5')
            a('s_lshl_b32 s5, s55, %d'%(4+lg2)); a('s_add_u32 s63, s63, s5'); a('v_lshlrev_b32 v31, 4, v1')
            a('v_lshrrev_b32 v42, %d, v0'%(2+lg2)); a('v_mul_u32_u24 v42, %d, v42'%(ss<<(lg2-1))); a('v_bfe_u32 v36, v0, 2, %d'%lg2); a('v_lshl_add_u32 v42, v36, 4, v42')
            a('s_mul_i32 s5, s53, 896'); a('s_lshl_b32 s7, s55, %d'%(3+lg2)); a('s_add_u32 s5, s5, s7'); a('v_and_b32 v36, %d, v1'%((1<<lg2)-1)); a('v_lshl_add_u32 v32, v36, 3, s5')
        vm('buffer_load_dwordx2 v[34:35], v32, s[36:39], 0 offen')
        if pt&1: vm('buffer_load_dword v38, v30, s[48:51], s62 offen sc1')
        if pt&2: vm('buffer_load_dword v39, v30, s[48:51], s63 offen sc1')
        if pt&4: vm('buffer_load_dword v38, v27, s[48:51], s67 offen sc1')
        if pt&8:
            a('s_cmp_lg_u32 s52, 7'); a('s_cbranch_scc1 L_pt'); a('s_cmp_ge_u32 s55, 14'); a('s_cbranch_scc1 L_pt')
            for k in range(8): a('buffer_load_dword v39, v31, s[48:51], s%d offen sc1'%(68+k))
            a('L_pt:')
    def ml2():
        wait(st['ml']); spin('L_mls',[ML],'v_cmp_ne_u32 vcc, s101, v26')
        a('v_mov_b32 v36, v24')
        for c in (Q1,Q2,HM): dpp('v_max_f32',36,36,36,c)
        a('v_sub_f32 v24, v24, v36'); a('v_mul_f32 v24, s66, v24'); a('v_exp_f32 v24, v24'); a('v_mul_f32 v25, v24, v25')
        for c in (Q1,Q2,HM): dpp('v_add_f32',25,25,25,c)
        a('v_rcp_f32 v25, v25'); a('v_mul_f32 v33, v24, v25'); a('v_readlane_b32 s76, v33, s4')
    W(t_ml,ml1)
    def ptouch():
        for bit,wv,sr in ((16,6,63),(32,4,62)):
            if pt&bit and lg2 and wv==6:
                a('s_cmp_lg_u32 s52, 6'); a('s_cbranch_scc1 L_pq6'); a('s_cmp_ge_u32 s55, %d'%(112>>lg2)); a('s_cbranch_scc1 L_pq6'); a('v_lshlrev_b32 v25, %d, v1'%(4+lg2))
                a('s_lshl_b32 s63, s53, 17'); a('s_add_u32 s63, s63, %d'%REC2); a('s_mul_i32 s5, s55, %d'%(ss<<(lg2-1))); a('s_add_u32 s63, s63, s5')
                a('buffer_load_dword v24, v25, s[48:51], s63 offen sc1'); a('L_pq6:')
            elif pt&bit:
                a('s_cmp_lg_u32 s52, %d'%wv); a('s_cbranch_scc1 L_pq%d'%wv); a('v_lshlrev_b32 v25, %d, v1'%(6 if (pt&128 and wv==4) else 5))
                a('buffer_load_dword v24, v25, s[48:51], s%d offen %s'%(sr,'' if pt&64 else 'sc1')); a('L_pq%d:'%wv)
    W(31,ptouch)
    for t in range(t0,65):
        if t<64:
            if t-dep(t)>=0: wait(ms[t-dep(t)])
            if asym and asym[0]<=t<asym[1] and (t-asym[0])%asym[3]==0:
                a('s_cmp_lg_u32 s96, 0'); L.append('s_cbranch_scc1 1'); wait(ms[t-dep(t)+asym[2]])
            issue(t)
        if t in prio:
            a('s_cmp_lt_u32 s52, 4'); a('s_cbranch_scc1 L_pr%d'%t); a('s_setprio %d'%prio[t]); a('L_pr%d:'%t)
        for f in work[t]: f()
        if pro==2 and t in tst: stamp(2+tst.index(t),2)
    for t in range(65,70): assert not work[t]
    stamp(4)
    OL='buffer_load_dword v38, v27, s[48:51], s67 offen sc1'
    def xred(base,src,soff,lab):
        a('ds_write_b128 v28, v[%d:%d] offset:%d'%(src,src+3,base)); a('ds_write_b128 v28, v[%d:%d] offset:%d'%(src+4,src+7,base+DH))
        if not lab: st['ol']=vm(OL)
        lg(); a('s_barrier')
        if lab: a('s_cmp_eq_u32 s52, 7'); a('s_cbranch_scc1 '+lab)
        a('ds_read_b128 v[80:83], v29 offset:%d'%base); a('ds_read_b128 v[84:87], v29 offset:%d'%(base+WS))
        if lab: lg()
        else: a('ds_read_b32 v39, v37 offset:%d'%base); a('s_waitcnt lgkmcnt(1)')
        a('v_pk_add_f32 v[80:81], v[80:81], v[84:85]'); a('v_pk_add_f32 v[82:83], v[82:83], v[86:87]')
        for c in (Q1,Q2):
            for d in range(4): dpp('v_add_f32',80+d,80+d,80+d,c)
        tag(80)
        a('s_mov_b32 exec_lo, 0x11111111'); a('s_mov_b32 exec_hi, 0x11111111')
        vm('buffer_store_dwordx4 v[80:83], v%d, s[48:51], %s offen sc1'%(42 if lab and lg2 else 30,soff))
    for d in range(8): a('v_permlane32_swap_b32 v%d, v%d'%(64+d,72+d))
    for d in range(0,8,2): a('v_pk_add_f32 v[%d:%d], v[%d:%d], v[%d:%d]'%(64+d,65+d,64+d,65+d,72+d,73+d))
    for d in range(0,8,2): a('v_pk_mul_f32 v[%d:%d], v[%d:%d], v[90:91]'%(64+d,65+d,64+d,65+d))
    xred(OR,64,'s67' if h1 else 's62',None)
    a('s_mov_b64 exec, -1')
    if late: wo_perm()
    ml2(); lg(); a('v_mul_f32 v24, s76, v39')
    wait(st['ol']); spin('L_os',[OL],'v_cmp_ne_u32_sdwa vcc, v38, v41 src0_sel:BYTE_0 src1_sel:BYTE_0')
    stamp(5)
    a('v_and_b32 v38, 0xffffff00, v38'); a('v_fmac_f32 v24, v38, v33')
    for c in (Q1,Q2,HM): dpp('v_add_f32',24,24,24,c)
    a('v_mov_b32_dpp v25, v24 row_ror:8 row_mask:0xf bank_mask:0xf'); a('v_cvt_pk_bf16_f32 v24, v24, v25')
    for p in range(4): a('v_readlane_b32 s%d, v24, %d'%(76+p,16*p))
    for p in range(4):
        for d in range(8): a('v_dot2_f32_bf16 v%d, v%d, s%d, v%d'%(48+d,192+8*p+d,76+p,48+d))
    xred(OP,48,'s63','L_fin')
    a('s_branch L_done')
    a('L_fin:')
    a('s_cmp_ge_u32 s55, %d'%(112>>lg2 if lg2 else 14)); a('s_cbranch_scc1 L_done')
    def FL(b): return ['buffer_load_dwordx4 v[%d:%d], v31, s[48:51], s%d offen sc1'%(b+4*k,b+3+4*k,68+k) for k in range(8)]
    def lv1(b):
        for k in range(0,16,2): a('v_pk_add_f32 v[%d:%d], v[%d:%d], v[%d:%d]'%(64+k,65+k,b+k,b+1+k,b+16+k,b+17+k))
    if lg2:
        F2=['buffer_load_dwordx4 v[%d:%d], v31, s[48:51], s68 offen offset:%d sc1'%(64+4*k,67+4*k,1024*k) for k in range(1<<lg2)]
        for l in F2: a(l)
        a('s_waitcnt vmcnt(0)'); spin('L_fs',F2,list(range(64,64+(4<<lg2))))
    elif not ns:
        for l in FL(96): a(l)
        a('s_waitcnt vmcnt(0)'); spin('L_fs',FL(96),list(range(96,128))); lv1(96)
    else:
        for i in range(ns):
            for l in FL(96+32*i): a(l)
        a('s_mov_b32 s61, 20000'); a('L_fs:')
        for i in range(ns):
            a('s_waitcnt vmcnt(%d)'%(8*ns-8)); chk(list(range(96+32*i,128+32*i))); a('s_cbranch_vccz L_fd%d'%i)
            for l in FL(96+32*i): a(l)
        a('s_sub_u32 s61, s61, 1'); a('s_cbranch_scc0 L_fs'); a('s_waitcnt vmcnt(0)')
        for i in range(ns):
            a('L_fd%d:'%i); lv1(96+32*i)
            if i<ns-1: a('s_branch L_fe')
        a('L_fe:')
    for s in ((4,) if lg2==1 else (8,4)):
        for k in range(0,s,2): a('v_pk_add_f32 v[%d:%d], v[%d:%d], v[%d:%d]'%(64+k,65+k,64+k,65+k,64+s+k,65+s+k))
    a('v_lshlrev_b32 v36, 16, v34'); a('v_and_b32 v37, 0xffff0000, v34'); a('v_lshlrev_b32 v38, 16, v35'); a('v_and_b32 v39, 0xffff0000, v35')
    for c in ((Q1,Q2,HM) if not lg2 else (Q2,'row_ror:4','row_ror:8')[lg2-1:]):
        for d in range(4): dpp('v_add_f32',64+d,64+d,64+d,c)
    if lg2:
        for op in ('v_permlane16_swap_b32','v_permlane32_swap_b32'):
            for d in range(4): a('v_mov_b32 v%d, v%d'%(68+d,64+d))
            for d in range(4): a('%s v%d, v%d'%(op,64+d,68+d))
            a('v_pk_add_f32 v[64:65], v[64:65], v[68:69]'); a('v_pk_add_f32 v[66:67], v[66:67], v[70:71]')
    a('v_pk_add_f32 v[64:65], v[64:65], v[36:37]'); a('v_pk_add_f32 v[66:67], v[66:67], v[38:39]')
    a('v_cvt_pk_bf16_f32 v64, v64, v65'); a('v_cvt_pk_bf16_f32 v65, v66, v67')
    if lg2: a('s_mov_b64 exec, %d'%((1<<(1<<lg2))-1))
    else: a('s_mov_b32 exec_lo, 0x01010101'); a('s_mov_b32 exec_hi, 0x01010101')
    a('buffer_store_dwordx2 v[64:65], v32, s[40:43], 0 offen '+osc)
    a('s_cmp_lg_u32 s2, 0'); a('s_cbranch_scc1 L_done'); a('s_mov_b64 exec, 1'); a('s_mov_b32 s5, %d'%CN); a('buffer_store_dword v4, off, s[48:51], s5 sc1')
    a('L_done:')
    if stamps:
        stamp(6); a('s_getreg_b32 s97, hwreg(HW_REG_XCC_ID)'); srd(8,86,'0x20000000',1<<20)
        a('s_lshl_b32 s5, s2, 3'); a('s_add_u32 s5, s5, s52'); a('s_lshl_b32 s5, s5, 5'); a('s_mov_b64 exec, 1')
        for k in range(8): a('v_mov_b32 v%d, s%d'%(8+k,90+k if k!=6 else 100))
        a('buffer_store_dwordx4 v[8:11], off, s[8:11], s5'); a('buffer_store_dwordx4 v[12:15], off, s[8:11], s5 offset:16')
    a('L_end:')
    ref=open('parallel_sum__sliding_block_cached__swiglu_ffn__decode.s.ref').read().split('\n')
    i0=[i for i,l in enumerate(ref) if l.startswith(KN+':')][0]; i1=[i for i,l in enumerate(ref) if l.startswith('s_endpgm')][0]
    hdr=['; @launch grid=(256,1,1) block=(512,1,1) lds=%d'%LDS if l.startswith('; @launch') else l for l in ref[:i0+1]]
    body=[l if l.endswith(':') else '    '+l for l in pad(L)]
    return '\n'.join(hdr+body+ref[i1:])
if __name__=='__main__':
    from asm import build
    name=sys.argv[1]; kw=eval('dict(%s)'%(sys.argv[2] if len(sys.argv)>2 else ''))
    open(name+'.s','w').write(gen(**kw)); build(name+'.s',name+'.co')
```
